```python
import torch

def _softmax(x, axis=-1):
    return torch.softmax(x, dim=axis)
def _gelu(x):
    return torch.nn.functional.gelu(x, approximate="tanh")
def _silu(x):
    return torch.nn.functional.silu(x)
def _sigmoid(x):
    return torch.sigmoid(x)
def _layernorm(x, axis=-1, eps=1e-5):
    m = x.mean(dim=axis, keepdim=True)
    v = x.var(dim=axis, keepdim=True, unbiased=False)
    return (x - m) / torch.sqrt(v + eps)
def _scatter_add(tgt, idx, src, axis=0):
    return tgt.clone().index_add_(axis, idx, src)
def _segment_sum(src, seg, n):
    out = torch.zeros((n,) + src.shape[1:], dtype=src.dtype)
    return out.index_add_(0, seg, src)
def _pad(x, pw):
    flat = tuple(v for pair in reversed(pw) for v in pair)
    return torch.nn.functional.pad(x, flat)

kernel_name = 'standalone__gqa_block_cached__near_ridge'

def setup_inputs():

    _w = (lambda a: (lambda t: t.to(torch.bfloat16) if t.is_floating_point() else t)(torch.as_tensor(a)))
    B, Sq, D = 8, 48, 1024
    Hq, Hkv, Sk, Dh = 32, 4, 1024, 128
    assert Hq % Hkv == 0, (Hq, Hkv)
    return {
        "x": _w((lambda *s: torch.randn(*s, dtype=torch.bfloat16) * 0.8)(B, Sq, D)),
        "k_cache": _w((lambda *s: torch.randn(*s, dtype=torch.bfloat16) * 0.8)(B, Hkv, Sk, Dh)),
        "v_cache": _w((lambda *s: torch.randn(*s, dtype=torch.bfloat16) * 0.05)(B, Hkv, Sk, Dh)),
        "wq": _w((lambda *s: torch.randn(*s, dtype=torch.bfloat16) * 0.8)(D, Hq * Dh) * (D ** -0.5)),
        "wo": _w((lambda *s: torch.randn(*s, dtype=torch.bfloat16) * 0.05)(Hq * Dh, D) * ((Hq * Dh) ** -0.5)),
    }

def reference(x, k_cache, v_cache, wq, wo):
    B, Sq, D = x.shape
    Hq, Dh = 32, 128
    Hkv = k_cache.shape[1]
    rep = Hq // Hkv
    q = (lambda x, *d: x.permute(*d))((x @ wq).reshape(B, Sq, Hq, Dh), 0, 2, 1, 3)
    k = (lambda x, n, axis: torch.repeat_interleave(x, n, dim=axis))(k_cache, rep, axis=1)
    v = (lambda x, n, axis: torch.repeat_interleave(x, n, dim=axis))(v_cache, rep, axis=1)
    scores = torch.einsum("bhqd,bhkd->bhqk", q, k) * (Dh ** -0.5)
    p = _softmax(scores, axis=-1)
    o = torch.einsum("bhqk,bhkd->bhqd", p, v)
    return (lambda x, *d: x.permute(*d))(o, 0, 2, 1, 3).reshape(B, Sq, Hq * Dh) @ wo
```

```python
HDR = open('standalone__gqa_block_cached__near_ridge.s.ref').read().split('; Override launch')[0]
def desc(name, nv=128):
    return f""".amdhsa_kernel {name}
  .amdhsa_next_free_vgpr {nv}
  .amdhsa_next_free_sgpr 96
  .amdhsa_accum_offset {nv}
  .amdhsa_group_segment_fixed_size 0
  .amdhsa_kernarg_size 64
  .amdhsa_user_sgpr_count 2
  .amdhsa_user_sgpr_kernarg_segment_ptr 1
  .amdhsa_system_sgpr_workgroup_id_x 1
.end_amdhsa_kernel
"""
def srd(A, d, b, n):
    A(f"s_mov_b32 s{d}, s{b}\ns_and_b32 s{d+1}, s{b+1}, 0xffff\ns_mov_b32 s{d+2}, {n}\ns_mov_b32 s{d+3}, 0x20000")
def start(A, name, nwg):
    A(f".globl {name}\n.p2align 8\n.type {name},@function\n{name}:")
    A(f"s_cmp_ge_u32 s2, {nwg}\ns_cbranch_scc1 {name}_end")
    A("s_load_dwordx16 s[4:19], s[0:1], 0\ns_waitcnt lgkmcnt(0)")
def gemm(A, name, M, N, K, aptr, aoff, abytes, bptr, bbytes, cptr, coff, cbytes):
    nt = N // 16
    start(A, name, (M//16)*nt)
    srd(A, 20, aptr, abytes); srd(A, 24, bptr, bbytes); srd(A, 28, cptr, cbytes)
    import math
    A(f"s_and_b32 s32, s2, {nt-1}\ns_lshr_b32 s33, s2, {int(math.log2(nt))}")
    A("v_and_b32 v1, 15, v0\nv_lshrrev_b32 v2, 4, v0")
    A(f"s_lshl_b32 s34, s33, 4\nv_add_u32 v3, s34, v1\ns_mov_b32 s35, {K*2}\nv_mul_lo_u32 v4, v3, s35\nv_lshlrev_b32 v5, 4, v2\nv_add_u32 v4, v4, v5")
    A(f"v_add_u32 v4, {aoff}, v4")
    A(f"s_lshl_b32 s34, s32, 4\nv_add_u32 v6, s34, v1\nv_lshlrev_b32 v6, 1, v6\ns_mov_b32 s35, {8*N*2}\nv_mul_lo_u32 v7, v2, s35\nv_add_u32 v6, v6, v7")
    for r in range(4): A(f"v_mov_b32 v{20+r}, 0")
    A("s_mov_b32 s36, 0\ns_mov_b32 s37, 0\ns_mov_b32 s38, 0")
    A(f"{name}_loop:")
    A("buffer_load_dwordx4 v[8:11], v4, s[20:23], s37 offen")
    for j in range(8):
        A(f"s_add_u32 s39, s38, {j*N*2}")
        A(f"buffer_load_ushort v{32+j}, v6, s[24:27], s39 offen")
    A("s_waitcnt vmcnt(0)")
    for j in range(4): A(f"v_lshl_or_b32 v{12+j}, v{33+2*j}, 16, v{32+2*j}")
    A("s_nop 1")
    A("v_mfma_f32_16x16x32_bf16 v[20:23], v[12:15], v[8:11], v[20:23]")
    A(f"s_add_u32 s37, s37, 64\ns_add_u32 s38, s38, {32*N*2}\ns_add_u32 s36, s36, 1\ns_cmp_lt_u32 s36, {K//32}\ns_nop 7\ns_cbranch_scc1 {name}_loop")
    A("s_nop 7\ns_nop 7")
    A("v_cvt_pk_bf16_f32 v24, v20, v21\nv_cvt_pk_bf16_f32 v25, v22, v23")
    A(f"s_mov_b32 s35, {N*2}\nv_mul_lo_u32 v4, v3, s35\nv_lshlrev_b32 v5, 3, v2\nv_add_u32 v4, v4, v5\ns_lshl_b32 s34, s32, 5\ns_add_u32 s34, s34, {coff}")
    A("buffer_store_dwordx2 v[24:25], v4, s[28:31], s34 offen\ns_waitcnt vmcnt(0)")
    A(f"{name}_end:\ns_endpgm")
def attn(A, name):
    start(A, name, 768)
    srd(A, 20, 18, 8<<20); srd(A, 24, 6, 8<<20); srd(A, 28, 8, 8<<20)
    A("s_lshr_b32 s32, s2, 8\ns_and_b32 s33, s2, 255\ns_lshr_b32 s34, s33, 5\ns_and_b32 s35, s33, 31")
    A("v_and_b32 v1, 15, v0\nv_lshrrev_b32 v2, 4, v0")
    A("s_mul_i32 s36, s34, 48\ns_lshl_b32 s37, s32, 4\ns_add_u32 s36, s36, s37\nv_add_u32 v3, s36, v1\nv_lshlrev_b32 v3, 13, v3")
    A("s_lshl_b32 s37, s35, 8\nv_add_u32 v3, s37, v3\nv_lshlrev_b32 v4, 4, v2\nv_add_u32 v4, v3, v4")
    for u in range(4): A(f"buffer_load_dwordx4 v[{16+4*u}:{19+4*u}], v4, s[20:23], 0 offen offset:{64*u}")
    A("s_lshr_b32 s37, s33, 3\ns_lshl_b32 s40, s37, 18")
    A("v_lshlrev_b32 v5, 8, v1\nv_lshlrev_b32 v6, 4, v2\nv_add_u32 v5, v5, v6")
    A("v_lshlrev_b32 v6, 10, v2\nv_lshlrev_b32 v7, 1, v1\nv_add_u32 v6, v6, v7")
    A("v_mov_b32 v8, 0xff800000")
    def qk(dst, so):
        for u in range(4): A(f"buffer_load_dwordx4 v[{32+4*u}:{35+4*u}], v5, s[24:27], {so} offen offset:{64*u}")
        A("s_waitcnt vmcnt(0)")
        A(f"v_mfma_f32_16x16x32_bf16 v[{dst}:{dst+3}], v[32:35], v[16:19], 0")
        for u in range(1,4): A(f"v_mfma_f32_16x16x32_bf16 v[{dst}:{dst+3}], v[{32+4*u}:{35+4*u}], v[{16+4*u}:{19+4*u}], v[{dst}:{dst+3}]")
        A("s_nop 7\ns_nop 1")
    A("s_mov_b32 s41, s40\ns_mov_b32 s42, 0")
    A(f"{name}_p1:")
    qk(48, 's41')
    A("v_max3_f32 v8, v8, v48, v49\nv_max3_f32 v8, v8, v50, v51")
    A(f"s_add_u32 s41, s41, 4096\ns_add_u32 s42, s42, 1\ns_cmp_lt_u32 s42, 64\ns_cbranch_scc1 {name}_p1")
    for x in (16, 32):
        A(f"v_xor_b32 v9, {x}, v0\nv_lshlrev_b32 v9, 2, v9\nds_bpermute_b32 v10, v9, v8\ns_waitcnt lgkmcnt(0)\nv_max_f32 v8, v8, v10")
    import math, struct
    c = struct.unpack('<I', struct.pack('<f', math.log2(math.e) / math.sqrt(128)))[0]
    A(f"s_mov_b32 s43, {c}\nv_mul_f32 v8, s43, v8\nv_mov_b32 v11, 0")
    for r in range(32): A(f"v_mov_b32 v{64+r}, 0")
    A("s_mov_b32 s41, s40\ns_mov_b32 s42, 0")
    A(f"{name}_p2:")
    qk(48, 's41')
    A("s_add_u32 s44, s41, 4096")
    qk(52, 's44')
    for r in range(8):
        A(f"v_fma_f32 v{48+r}, v{48+r}, s43, -v8\nv_exp_f32 v{48+r}, v{48+r}\ns_nop 0\nv_add_f32 v11, v11, v{48+r}")
    for r in range(4): A(f"v_cvt_pk_bf16_f32 v{56+r}, v{48+2*r}, v{49+2*r}")
    for t in range(8):
        for j in range(8):
            so = 's41' if j < 4 else 's44'
            A(f"buffer_load_ushort v{128+8*t+j}, v6, s[28:31], {so} offen offset:{(j&3)*256 + t*32}")
        if t == 3: A("s_waitcnt vmcnt(0)")
    A("s_waitcnt vmcnt(0)")
    for j in range(32): A(f"v_lshl_or_b32 v{96+j}, v{129+2*j}, 16, v{128+2*j}")
    A("s_nop 1")
    for t in range(8):
        A(f"v_mfma_f32_16x16x32_bf16 v[{64+4*t}:{67+4*t}], v[{96+4*t}:{99+4*t}], v[56:59], v[{64+4*t}:{67+4*t}]")
    A(f"s_add_u32 s41, s41, 8192\ns_add_u32 s42, s42, 1\ns_cmp_lt_u32 s42, 32\ns_cbranch_scc1 {name}_p2")
    for x in (16, 32):
        A(f"v_xor_b32 v9, {x}, v0\nv_lshlrev_b32 v9, 2, v9\nds_bpermute_b32 v10, v9, v11\ns_waitcnt lgkmcnt(0)\nv_add_f32 v11, v11, v10")
    A("v_rcp_f32 v11, v11\ns_nop 7\ns_nop 7")
    A("v_lshlrev_b32 v4, 3, v2\nv_add_u32 v4, v3, v4")
    A(f"s_mov_b32 s45, {4<<20}")
    for t in range(8):
        for r in range(4): A(f"v_mul_f32 v{64+4*t+r}, v{64+4*t+r}, v11")
        A(f"v_cvt_pk_bf16_f32 v{64+4*t}, v{64+4*t}, v{65+4*t}\nv_cvt_pk_bf16_f32 v{65+4*t}, v{66+4*t}, v{67+4*t}")
        A(f"buffer_store_dwordx2 v[{64+4*t}:{65+4*t}], v4, s[20:23], s45 offen offset:{32*t}")
    A("s_waitcnt vmcnt(0)")
    A(f"{name}_end:\ns_endpgm")

def gen(pre_launch=[], pre_code="", pre_desc=""):
    o = []; A = o.append
    A(HDR.rstrip())
    for l in pre_launch: A(l)
    A("; @launch kernel=qproj_kernel grid=(6144,1,1) block=(64,1,1) lds=0")
    A("; @launch kernel=attn_kernel grid=(768,1,1) block=(64,1,1) lds=0")
    A("; @launch kernel=oproj_kernel grid=(1536,1,1) block=(64,1,1) lds=0")
    A('.amdgcn_target "amdgcn-amd-amdhsa--gfx950"\n.text')
    A(pre_code)
    gemm(A, "qproj_kernel", 384, 4096, 1024, 4, 0, 384*1024*2, 10, 8<<20, 18, 0, 8<<20)
    attn(A, "attn_kernel")
    gemm(A, "oproj_kernel", 384, 1024, 4096, 18, 4<<20, 8<<20, 12, 8<<20, 14, 0, 384*1024*2)
    A('.section .rodata,"a"\n.p2align 6')
    A(pre_desc)
    for n in ["qproj_kernel", "attn_kernel", "oproj_kernel"]:
        A(".p2align 6"); A(desc(n, 192 if n == "attn_kernel" else 64))
    return "\n".join(o)
if __name__ == "__main__":
    open('simple.s', 'w').write(gen())
```

```python
import simple_gen as S
def probe(kind, nt="", ptr=6, amp=20):
    o = []; A = o.append
    name = "probe_kernel"
    if kind == 'empty':
        A(f".globl {name}\n.p2align 8\n.type {name},@function\n{name}:\ns_endpgm")
        launches = [f"; @launch kernel=probe_kernel grid=(256,1,1) block=(512,1,1) lds=0"] * 20
        return launches, "\n".join(o), ".p2align 6\n" + S.desc(name, 128)
    S.start(A, name, 256)
    A("v_lshrrev_b32 v1, 6, v0\ns_nop 0\nv_readfirstlane_b32 s40, v1\nv_and_b32 v2, 63, v0\nv_lshlrev_b32 v2, 4, v2")
    if kind == 'bw':
        A("s_lshr_b32 s41, s2, 6\ns_and_b32 s42, s2, 63")
        A("s_mov_b32 s20, s6\ns_mov_b32 s21, s7")
        for i, p in enumerate([8, 10, 12]):
            A(f"s_cmp_eq_u32 s41, {i+1}\ns_cselect_b32 s20, s{p}, s20\ns_cselect_b32 s21, s{p+1}, s21")
        A(f"s_and_b32 s21, s21, 0xffff\ns_mov_b32 s22, {8<<20}\ns_mov_b32 s23, 0x20000")
        A("s_lshl_b32 s43, s42, 17\ns_lshl_b32 s44, s40, 14\ns_add_u32 s43, s43, s44")
        A("s_barrier\ns_memrealtime s[50:51]\ns_waitcnt lgkmcnt(0)")
        for u in range(16):
            A(f"buffer_load_dwordx4 v[{8+4*u}:{11+4*u}], v2, s[20:23], s43 offen {nt}\ns_add_u32 s43, s43, 1024")
        A("s_waitcnt vmcnt(0)\ns_barrier")
    elif kind == 'lock':
        S.srd(A, 20, 6, 8<<20); S.srd(A, 24, 8, 8<<20)
        A("s_and_b32 s41, s2, 7\ns_lshr_b32 s42, s2, 6\ns_lshl_b32 s41, s41, 2\ns_add_u32 s41, s41, s42\ns_lshl_b32 s43, s41, 18\ns_lshl_b32 s44, s40, 10\ns_add_u32 s43, s43, s44")
        A("s_barrier\ns_memrealtime s[50:51]\ns_waitcnt lgkmcnt(0)")
        for u in range(32):
            A(f"s_waitcnt vmcnt(6)\nbuffer_load_dwordx4 v[{8+8*(u%4)}:{11+8*(u%4)}], v2, s[20:23], s43 offen {nt}")
            A(f"buffer_load_dwordx4 v[{12+8*(u%4)}:{15+8*(u%4)}], v2, s[24:27], s43 offen {nt}\ns_add_u32 s43, s43, 8192")
        A("s_waitcnt vmcnt(0)\ns_barrier")
    elif kind == 'lat':
        A(f"s_cmp_ge_u32 s2, 8\ns_cbranch_scc1 {name}_end\ns_cmp_ge_u32 s40, 1\ns_cbranch_scc1 {name}_end")
        S.srd(A, 20, ptr, 768*1024)
        A("s_mul_i32 s43, s2, 65536")
        A("v_mov_b32 v2, 0")
        A(f"buffer_load_dword v8, v2, s[20:23], s43 offen {nt}\ns_add_u32 s43, s43, 2048\ns_waitcnt vmcnt(0)")
        A("s_memrealtime s[50:51]\ns_waitcnt lgkmcnt(0)")
        for u in range(20):
            A(f"buffer_load_dword v8, v2, s[20:23], s43 offen {nt}\ns_add_u32 s43, s43, 2048\ns_waitcnt vmcnt(0)")
    A("s_memrealtime s[52:53]\ns_waitcnt lgkmcnt(0)")
    A(f"s_sub_u32 s54, s52, s50\ns_min_u32 s54, s54, 5000\ns_mul_i32 s54, s54, {amp}")
    A(f"{name}_spin:\ns_memrealtime s[56:57]\ns_waitcnt lgkmcnt(0)\ns_sub_u32 s58, s56, s52\ns_cmp_lt_u32 s58, s54\ns_cbranch_scc1 {name}_spin")
    A(f"{name}_end:\ns_endpgm")
    launches = [f"; @launch kernel=probe_kernel grid=(256,1,1) block=(512,1,1) lds=0"]
    return launches, "\n".join(o), ".p2align 6\n" + S.desc(name, 128)
import sys
cfgs = {'empty': ('empty',), 'bw': ('bw',), 'bwnt': ('bw','nt'), 'lock': ('lock',), 'locknt': ('lock','nt'),
        'latx': ('lat','',4), 'latk': ('lat','',6), 'latv': ('lat','',8), 'latwq': ('lat','',10), 'latwo': ('lat','',12), 'latws': ('lat','',18), 'latout': ('lat','',14)}
for n, c in cfgs.items():
    l, code, d = probe(*c)
    open(f'probe_{n}.s', 'w').write(S.gen(l, code, d))
```

```python
import re

REG_RE = re.compile(r'(?<![\w.])(-?)(?:abs\()?([vsa])(?:(\d+)|\[(\d+):(\d+)\])')
TRANS = ('v_exp_f32', 'v_log_f32', 'v_rcp_f32', 'v_rsq_f32', 'v_sqrt_f32', 'v_sin_f32', 'v_cos_f32')


def regs_of(op):
    out = []
    op = op.strip()
    if op in ('vcc', 'vcc_lo', 'vcc_hi'):
        return ['vcc']
    if op in ('m0', 'exec', 'exec_lo', 'exec_hi'):
        return [op.split('_')[0]]
    m = REG_RE.match(op)
    if m:
        k = m.group(2)
        if m.group(3) is not None:
            out.append(k + m.group(3))
        else:
            out += [k + str(i) for i in range(int(m.group(4)), int(m.group(5)) + 1)]
    return out


class Ins:
    __slots__ = ('text', 'op', 'rd', 'wr', 'kind', 'srcA', 'srcC', 'sdata')

    def __init__(self, text):
        self.text = text
        t = text.split(';')[0].strip()
        self.rd = []; self.wr = []; self.kind = 'other'; self.srcA = []; self.srcC = []; self.sdata = []
        if not t or t.endswith(':') or t.startswith('.'):
            self.op = ''; self.kind = 'label' if t.endswith(':') else 'dir'
            return
        t = re.sub(r'\b\w+:\[[^\]]*\]', '', t).strip()
        parts = t.split(None, 1)
        op = parts[0]
        for suf in ('_e32', '_e64'):
            if op.endswith(suf):
                op = op[:-4]
        self.op = op
        ops = []
        if len(parts) > 1:
            ops = [x.strip() for x in parts[1].split(',')]
            ops[-1] = ops[-1].split()[0] if ops[-1] else ''
        R = [regs_of(o) for o in ops]
        flat = lambda l: [r for x in l for r in x]
        if op.startswith('v_mfma'):
            self.kind = 'mfma'; self.wr = R[0]; self.srcA = R[1] + R[2]; self.srcC = R[3]; self.rd = self.srcA + self.srcC
        elif op.startswith('v_permlane'):
            self.kind = 'valu'; self.wr = R[0] + R[1]; self.rd = R[0] + R[1]
        elif op.startswith('v_cmp'):
            self.kind = 'valu'; self.wr = R[0]; self.rd = flat(R[1:])
        elif op in ('v_fmac_f32',):
            self.kind = 'valu'; self.wr = R[0]; self.rd = flat(R)
        elif op.startswith('v_'):
            self.kind = 'valu'; self.wr = R[0]; self.rd = flat(R[1:])
        elif op.startswith('ds_read') or op.startswith('ds_bperm'):
            self.kind = 'ds'; self.wr = R[0]; self.rd = flat(R[1:])
        elif op.startswith('ds_write'):
            self.kind = 'ds'; self.rd = flat(R)
        elif op.startswith('buffer_load'):
            self.kind = 'vmem'
            if re.search(r'\blds\b', t):
                self.rd = flat(R) + ['m0']
            else:
                self.wr = R[0]; self.rd = flat(R[1:])
        elif op.startswith('buffer_store') or op.startswith('buffer_atomic'):
            self.kind = 'vmem'; self.rd = flat(R)
            if 'x4' in op or 'x3' in op:
                self.sdata = R[0]
        elif op == 'buffer_wbl2':
            self.kind = 'vmem'
        elif op.startswith('s_load') or op.startswith('s_mem'):
            self.kind = 'smem'; self.wr = R[0]; self.rd = flat(R[1:])
        elif op.startswith('s_atomic'):
            self.kind = 'smem'; self.rd = flat(R)
        elif op in ('s_waitcnt', 's_nop', 's_barrier', 's_endpgm', 's_setprio', 's_sleep', 's_branch') or op.startswith('s_cbranch'):
            self.kind = 'sctl'
        elif op.startswith('s_cmp') or op.startswith('s_bitcmp'):
            self.kind = 'salu'; self.rd = flat(R)
        elif op.startswith('s_'):
            self.kind = 'salu'; self.wr = R[0] if R else []; self.rd = flat(R[1:])
        else:
            raise ValueError('unknown instruction: ' + text)


def need(p, c):
    n = 0
    pw = set(p.wr)
    if p.kind == 'valu':
        pv = {r for r in pw if r[0] in 'va' and r != 'vcc'}
        ps = {r for r in pw if r[0] == 's' or r == 'vcc'}
        if c.kind == 'mfma' and pv & set(c.rd): n = max(n, 2)
        if c.op.startswith('v_permlane') and pv & set(c.rd): n = max(n, 2)
        if c.op.startswith('v_read') and pv & set(c.rd): n = max(n, 1)
        if p.op in TRANS and c.kind in ('valu', 'mfma', 'ds', 'vmem') and pv & set(c.rd): n = max(n, 1)
        if c.kind == 'valu' and ps & set(c.rd): n = max(n, 2)
        if c.kind == 'vmem' and ps & set(c.rd): n = max(n, 5)
        if 'exec' in pw and c.kind == 'mfma': n = max(n, 4)
    if p.kind == 'mfma':
        big = '32x32' in p.op
        if c.kind in ('valu', 'ds', 'vmem') and pw & (set(c.rd) | set(c.wr)): n = max(n, 12 if big else 8)
        if c.kind == 'mfma':
            if pw & set(c.srcA): n = max(n, 12 if big else 8)
            if pw & set(c.srcC) and p.wr != c.srcC: n = max(n, 10 if big else 6)
        if c.kind == 'valu' and set(p.srcC) & set(c.wr): n = max(n, 7 if big else 3)
    if p.sdata and set(p.sdata) & set(c.wr): n = max(n, 2)
    if p.kind == 'salu' and 'm0' in pw and 'm0' in c.rd and c.kind == 'vmem': n = max(n, 1)
    return n


class Stream:
    def __init__(self, name=''):
        self.name = name
        self.out = []
        self.vm = []; self.lg = []
        self.vm_done = 0; self.lg_done = 0
        self.pend = {}
        self.nops = 0

    def fork(self, name):
        s = Stream(name)
        s.vm = list(self.vm); s.lg = list(self.lg); s.vm_done = self.vm_done; s.lg_done = self.lg_done
        s.pend = dict(self.pend)
        s.hist = list(self.out[-16:])
        return s

    hist = []

    def _pad(self, c):
        dist = 0; req = 0
        for p in reversed(self.hist + self.out if len(self.out) < 16 else self.out[-24:]):
            if p.kind in ('label', 'dir'):
                continue
            n = need(p, c)
            if n > dist:
                req = max(req, n - dist)
            dist += (int(p.text.split()[1]) + 1) if p.op == 's_nop' else 1
            if dist >= 13:
                break
        if req:
            self.out.append(Ins(f's_nop {req - 1}')); self.nops += 1

    def i(self, text, tag=None):
        for line in text.split('\n'):
            line = line.strip()
            if not line:
                continue
            c = Ins(line)
            if c.kind in ('label', 'dir'):
                self.out.append(c); continue
            for r in c.rd + c.wr:
                if r in self.pend:
                    raise RuntimeError(f'[{self.name}] {line}: register {r} has a pending load {self.pend[r]}')
            self._pad(c)
            self.out.append(c)
            if c.kind == 'vmem':
                self.vm.append(tag)
                for r in c.wr: self.pend[r] = ('vm', len(self.vm) - 1)
            elif c.kind == 'ds':
                self.lg.append(tag)
                for r in c.wr: self.pend[r] = ('lg', len(self.lg) - 1)
            elif c.kind == 'smem':
                if not c.op.startswith('s_mem'):
                    for r in c.wr: self.pend[r] = ('sm', 0)
            elif c.op == 's_waitcnt':
                m = re.search(r'vmcnt\((\d+)\)', line)
                if m: self._done('vm', len(self.vm) - int(m.group(1)))
                m = re.search(r'lgkmcnt\((\d+)\)', line)
                if m:
                    self._done('lg', len(self.lg) - int(m.group(1)))
                    if int(m.group(1)) == 0:
                        self.pend = {r: v for r, v in self.pend.items() if v[0] != 'sm'}

    def _done(self, k, upto):
        if k == 'vm': self.vm_done = max(self.vm_done, upto)
        else: self.lg_done = max(self.lg_done, upto)
        lim = self.vm_done if k == 'vm' else self.lg_done
        self.pend = {r: v for r, v in self.pend.items() if not (v[0] == k and v[1] < lim)}

    def _cnt(self, lst, done, tag):
        if tag == '*':
            idx = len(lst) - 1
        else:
            ids = [n for n, t in enumerate(lst) if t == tag]
            assert ids, f'[{self.name}] no op tagged {tag}'
            idx = ids[-1]
        if idx < done:
            return None
        return len(lst) - 1 - idx

    def wait(self, vm=None, lg=None):
        p = []
        if vm is not None:
            n = self._cnt(self.vm, self.vm_done, vm)
            if n is not None: p.append(f'vmcnt({min(n, 63)})')
        if lg is not None:
            n = self._cnt(self.lg, self.lg_done, lg)
            if n is not None: p.append(f'lgkmcnt({min(n, 15)})')
        if p:
            self.i('s_waitcnt ' + ' '.join(p))

    def emit(self, item):
        if isinstance(item, str): self.i(item)
        elif isinstance(item, tuple): self.i(item[0], item[1])
        elif isinstance(item, dict): self.wait(**item)
        else: item()

    def weave(self, main, fill, start=0, per=None):
        n = len(main) - start
        k = 0
        for idx, m in enumerate(main):
            self.emit(m)
            if idx >= start:
                if per is None:
                    tgt = (len(fill) * (idx - start + 1) + n - 1) // n
                else:
                    tgt = min(len(fill), per * (idx - start + 1))
                while k < tgt:
                    self.emit(fill[k]); k += 1
        while k < len(fill):
            self.emit(fill[k]); k += 1

    def text(self):
        return '\n'.join(('' if x.kind in ('label', 'dir') else '    ') + x.text for x in self.out)
```

```python
import math, struct, sys
from asmlib import Stream

NAME = 'standalone__gqa_block_cached__near_ridge_kernel'
HDR = open('standalone__gqa_block_cached__near_ridge.s.ref').read().split('; Override launch')[0].rstrip()

WS_FLAGS, WS_Q, WS_PO, WS_O, WS_S2, WS_STAMP = 0, 0x10000, 0x400000, 0x800000, 0xC00000, 0x1000000
L_X = 0; L_WQ = 98304
L_K = [0, 32768, 98304, 131072]
L_Q = 65536; L_Q2 = 77824
L_V = 0; L_MISC = 49152
L_PB = 65536; L_PA = 114688
L_WO = 114688; L_O = 0
M_MAXA, M_MAXB, M_LA, M_LB, M_FLG = 0, 768, 1536, 2304, 3072
X, K, V, WQ, WO, OUT, WS = 's[4:7]', 's[8:11]', 's[12:15]', 's[16:19]', 's[20:23]', 's[24:27]', 's[28:31]'
sW, sHKV, sBH, sBL, sJ, sB, sG, sL = 's36', 's37', 's38', 's39', 's40', 's41', 's42', 's43'
sRING, sC, sCNT, sFAST = 's44', 's45', 's46', 's47'
TAB = 48
sT0, sT1, sT2, sT3 = 's56', 's57', 's58', 's59'
POLL = 60
sFLG = 's[68:69]'
STAMP0 = 70
SPIN_MAX = 1 << 20

def vr(a, n): return f'v[{a}:{a+n-1}]'
def mfma(d, a, b, c=None):
    return f'v_mfma_f32_16x16x32_bf16 {vr(d,4)}, {vr(a,4)}, {vr(b,4)}, {vr(c,4) if c is not None else 0}'
ACC = 16
def acc(t, rt): return ACC + (t*3 + rt)*4

class Gen:
    def __init__(self, diag=False, fast=True, **opt):
        self.diag = diag; self.fast = fast; self.opt = opt
        self.nlab = 0
        self.stamps = {'A': [], 'B': []}

    def lab(self, p):
        self.nlab += 1
        return f'L_{p}_{self.nlab}'

    def stamp(self, s, name):
        if not self.diag: return
        l = self.stamps[s.name]; n = len(l); l.append(name)
        assert n < 16
        s.i(f's_memrealtime s[{STAMP0+2*n}:{STAMP0+2*n+1}]')

    def dump_stamps(self, s):
        if not self.diag: return
        n = len(self.stamps[s.name])
        s.i('s_waitcnt vmcnt(0) lgkmcnt(0)')
        s.i(f's_lshl_b32 {sT0}, s2, 3\ns_add_u32 {sT0}, {sT0}, {sW}')
        if s.name == 'B': s.i(f's_add_u32 {sT0}, {sT0}, 4')
        s.i(f's_lshl_b32 {sT0}, {sT0}, 7\ns_add_u32 {sT0}, {sT0}, {WS_STAMP}\nv_mov_b32 v1, 0')
        for k in range(n):
            s.i(f'v_mov_b32 v2, s{STAMP0+2*k}\nbuffer_store_dword v2, v1, {WS}, {sT0} offen offset:{4*k}\ns_waitcnt vmcnt(0)')

    def poll(self, s, base, off, n, want, mask=None):
        lp = self.lab('poll')
        s.i('s_waitcnt lgkmcnt(0)')
        s.i(f's_mov_b32 {sCNT}, 0')
        s.i(f'{lp}:')
        s.i(f's_add_u32 {sCNT}, {sCNT}, 1\ns_cmp_gt_u32 {sCNT}, {SPIN_MAX}\ns_cbranch_scc1 L_end')
        if n == 1: s.i(f's_load_dword s{POLL}, {base}, {off} glc')
        else: s.i(f's_load_dwordx{n} s[{POLL}:{POLL+n-1}], {base}, {off} glc')
        s.i('s_waitcnt lgkmcnt(0)')
        if n == 8:
            s.i(f's_and_b64 s[{POLL}:{POLL+1}], s[{POLL}:{POLL+1}], s[{POLL+2}:{POLL+3}]')
            s.i(f's_and_b64 s[{POLL+4}:{POLL+5}], s[{POLL+4}:{POLL+5}], s[{POLL+6}:{POLL+7}]')
            s.i(f's_and_b64 s[{POLL}:{POLL+1}], s[{POLL}:{POLL+1}], s[{POLL+4}:{POLL+5}]')
            s.i(f's_and_b32 s{POLL}, s{POLL}, s{POLL+1}')
        if mask is not None: s.i(f's_and_b32 s{POLL}, s{POLL}, {mask}')
        s.i(f's_cmp_eq_u32 s{POLL}, {want}\ns_cbranch_scc0 {lp}')

    def xstores(self, s, items, tag):
        if not self.fast:
            for t in items: s.i(t + ' sc1', tag)
            return
        a, b = self.lab('slow'), self.lab('join')
        s.i(f's_cmp_eq_u32 {sFAST}, 0\ns_cbranch_scc1 {a}')
        for t in items: s.out.append(type(s.out[-1])(t))
        s.i(f's_branch {b}\n{a}:')
        for t in items: s.i(t + ' sc1', tag)
        s.i(f'{b}:')

    def flag(self, s, kind, tag, always_slow=False):
        s.i(f'v_mov_b32 v254, 0\nv_mov_b32 v255, 1')
        s.i(f's_lshl_b32 {sT0}, {sG}, 9\ns_lshl2_add_u32 {sT0}, {sJ}, {sT0}\ns_add_u32 {sT0}, {sT0}, {sW}')
        s.i('s_mov_b64 exec, 1')
        st = f'buffer_store_byte v255, v254, {WS}, {sT0} offen offset:{kind*128}'
        if always_slow: s.i(st + ' sc1', tag)
        else: self.xstores(s, [st], tag)
        s.i('s_mov_b64 exec, -1')

    def w_dma(self, srd, slot, soff, tag):
        it = [f's_add_u32 m0, {sRING}, {slot*4096}']
        if isinstance(soff, tuple):
            it.append(f's_add_u32 {sT3}, {soff[0]}, {soff[1]}'); soff = sT3
        for i in range(4):
            it.append((f'buffer_load_dwordx4 v{3+i}, {srd}, {soff} offen offset:{i*1024} lds', tag))
        return it

    def w_reads(self, dst, slot, tag):
        it = []
        for t in range(4):
            it.append((f'ds_read_b64_tr_b16 {vr(dst+4*t,2)}, v{7+t} offset:{slot*4096}', tag))
            it.append((f'ds_read_b64_tr_b16 {vr(dst+4*t+2,2)}, v{7+t} offset:{slot*4096+2048}', tag))
        return it

    def g_mfmas(self, wreg, breg, first, order=(0, 1, 2, 3)):
        return [mfma(acc(t, rt), wreg+4*t, breg+4*rt, None if first else acc(t, rt)) for t in order for rt in range(3)]

    def tr_addr(self, s, tmp):
        s.i(f'v_lshrrev_b32 v{tmp}, 2, v0')
        s.i(f'v_bfe_u32 v{tmp+1}, v0, 3, 2')
        s.i(f's_and_b32 {sT0}, {sW}, 1\ns_lshl_b32 {sT0}, {sT0}, 1')
        s.i(f'v_xor_b32 v{tmp+1}, {sT0}, v{tmp+1}')
        s.i(f'v_lshlrev_b32 v{tmp+1}, 5, v{tmp+1}')
        s.i(f'v_lshl_or_b32 v{tmp}, v{tmp}, 7, v{tmp+1}')
        s.i(f'v_and_b32 v{tmp+1}, 3, v0\nv_lshl_or_b32 v{tmp}, v{tmp+1}, 3, v{tmp}')
        for t in range(4):
            s.i(f'v_xor_b32 v{tmp+1}, {t<<5}, v{tmp}\nv_add_u32 v{7+t}, {sRING}, v{tmp+1}')

    def w_col(self, s, dst):
        s.i(f'v_lshrrev_b32 v{dst}, 3, v0\nv_and_b32 v{dst}, 6, v{dst}\nv_xor_b32 v{dst}, v{dst}, v0\nv_and_b32 v{dst}, 7, v{dst}\nv_lshlrev_b32 v{dst}, 4, v{dst}')

    def row_voff(self, s, dst, tmp, shift):
        s.i(f'v_lshrrev_b32 v{tmp}, 4, v0\ns_lshl_b32 {sT0}, {sW}, 2\nv_add_u32 v{tmp}, {sT0}, v{tmp}')
        s.i(f'v_xor_b32 v{dst}, v{tmp}, v0\nv_and_b32 v{dst}, 15, v{dst}\nv_lshlrev_b32 v{dst}, 4, v{dst}')
        s.i(f'v_lshl_or_b32 v{dst}, v{tmp}, {shift}, v{dst}')

    def sw_base(self, s, dst, tmp):
        s.i(f'v_lshrrev_b32 v{tmp}, 4, v0\nv_xor_b32 v{tmp}, v{tmp}, v0\nv_and_b32 v{tmp}, 15, v{tmp}\nv_lshlrev_b32 v{tmp}, 4, v{tmp}')
        s.i(f'v_and_b32 v{dst}, 15, v0\nv_lshl_or_b32 v{dst}, v{dst}, 8, v{tmp}')

    def ord_t(self, s, dst, t):
        s.i(f's_add_u32 {dst}, {sBL}, {t & 3}\ns_and_b32 {dst}, {dst}, 3')
        if t >> 2: s.i(f's_xor_b32 {sT1}, {sBH}, 1\ns_lshl2_add_u32 {dst}, {sT1}, {dst}')
        else: s.i(f's_lshl2_add_u32 {dst}, {sBH}, {dst}')

    def x_loads(self, s, i):
        s.i(f's_add_u32 {sT0}, {sJ}, {i}\ns_and_b32 {sT0}, {sT0}, 7')
        s.i(f's_lshr_b32 {sT1}, {sT0}, 2\ns_xor_b32 {sT1}, {sT1}, {sBH}\ns_sub_u32 {sT2}, {sT0}, {sBL}\ns_and_b32 {sT2}, {sT2}, 3\ns_lshl2_add_u32 {sT1}, {sT1}, {sT2}')
        s.i(f's_mul_i32 {sT1}, {sT1}, 12288\ns_lshl_b32 {sT2}, {sW}, 10\ns_add_u32 {sT1}, {sT1}, {sT2}')
        s.i(f's_lshl_b32 {sT0}, {sT0}, 8\ns_mul_i32 {sT2}, {sB}, {48*2048}\ns_add_u32 {sT0}, {sT0}, {sT2}')
        return [(f's_add_u32 m0, {sT1}, {L_X + rt*4096}', f's_add_u32 {sT2}, {sT0}, {rt*16*2048}',
                 f'buffer_load_dwordx4 v2, {X}, {sT2} offen lds') for rt in range(3)]

    def Kreg(self, t, kt, u): return 64 + 32*t + (kt*4 + u)*4
    def Sreg(self, t, kt, rt): return (192 if t == 0 else 64 + 32*(t-1)) + (kt*3 + rt)*4
    def Qreg(self, u, rt): return 16 + (u*3 + rt)*4
    MX, MC, LACC, ONES, TMP = 232, 235, 216, 228, 238

    def k_reads(self, t):
        return [(f'ds_read_b128 {vr(self.Kreg(t,kt,u),4)}, v{11+u} offset:{L_K[t] - L_K[t & 2] + kt*4096}', f'k{t}_{u}')
                for u in range(4) for kt in range(2)]

    def qk_mfmas(self, t):
        return [mfma(self.Sreg(t,kt,rt), self.Kreg(t,kt,u), self.Qreg(u,rt), None if u == 0 else self.Sreg(t,kt,rt))
                for u in range(4) for kt in range(2) for rt in range(3)]

    def max_ops(self, t):
        it = []
        for kt in range(2):
            for rt in range(3):
                r = self.Sreg(t, kt, rt); m = self.MX + rt
                if t == 0 and kt == 0:
                    it.append(f'v_max3_f32 v{m}, v{r}, v{r+1}, v{r+2}'); it.append(f'v_max_f32 v{m}, v{m}, v{r+3}')
                else:
                    it.append(f'v_max3_f32 v{m}, v{m}, v{r}, v{r+1}'); it.append(f'v_max3_f32 v{m}, v{m}, v{r+2}, v{r+3}')
        return it

    def max_publish(self, s, moff):
        T = self.TMP
        for sw in ('v_permlane32_swap_b32', 'v_permlane16_swap_b32'):
            for rt in range(3): s.i(f'v_mov_b32 v{T+rt}, v{self.MX+rt}')
            for rt in range(3): s.i(f'{sw} v{self.MX+rt}, v{T+rt}')
            for rt in range(3): s.i(f'v_max_f32 v{self.MX+rt}, v{self.MX+rt}, v{T+rt}')
        for rt in range(3): s.i(f'ds_write_b32 v250, v{self.MX+rt} offset:{moff + rt*256}', 'mxw')

    def misc_addr(self, s):
        s.i(f'v_and_b32 v251, 15, v0\nv_lshlrev_b32 v251, 4, v251\nv_add_u32 v251, {L_MISC}, v251')
        s.i(f's_lshl_b32 {sT0}, {sW}, 2\nv_add_u32 v250, {sT0}, v251')

    def max_fetch(self, s, moff, dst):
        T = self.TMP
        for rt in range(3): s.i(f'ds_read_b128 {vr(T+4*rt,4)}, v251 offset:{moff + rt*256}', f'mxr{rt}')
        for rt in range(3):
            s.wait(lg=f'mxr{rt}')
            r = T + 4*rt
            s.i(f'v_max3_f32 v{r}, v{r}, v{r+1}, v{r+2}\nv_max_f32 v{r}, v{r}, v{r+3}\nv_mul_f32 v{dst+rt}, {sC}, v{r}')

    def exp_phase(self, s, pbase, loff):
        s.i(f's_mul_i32 {sT0}, {sW}, 3072\ns_add_u32 {sT0}, {sT0}, {pbase}\nv_add_u32 v15, {sT0}, v1')
        for r in range(4): s.i(f'v_mov_b32 v{self.ONES+r}, 0x3f803f80')
        s.i('.p2align 3')
        groups = [(t, rt) for t in range(4) for rt in range(3)]
        def fm(t, rt): return [f'v_fma_f32 v{r}, v{r}, {sC}, -v{self.MC+rt}' for kt in range(2) for r in range(self.Sreg(t,kt,rt), self.Sreg(t,kt,rt)+4)]
        def ex(t, rt): return [f'v_exp_f32 v{r}, v{r}' for kt in range(2) for r in range(self.Sreg(t,kt,rt), self.Sreg(t,kt,rt)+4)]
        def cv(t, rt):
            a, b = self.Sreg(t,0,rt), self.Sreg(t,1,rt)
            return [f'v_cvt_pk_bf16_f32 v{a}, v{a}, v{a+1}', f'v_cvt_pk_bf16_f32 v{a+1}, v{a+2}, v{a+3}',
                    f'v_cvt_pk_bf16_f32 v{a+2}, v{b}, v{b+1}', f'v_cvt_pk_bf16_f32 v{a+3}, v{b+2}, v{b+3}']
        def out(t, rt):
            a = self.Sreg(t,0,rt)
            return [(f'ds_write_b128 v15, {vr(a,4)} offset:{t*12288 + rt*1024}', 'pw'),
                    mfma(self.LACC+4*rt, self.ONES, a, None if t == 0 else self.LACC+4*rt)]
        for x in fm(*groups[0]): s.i(x)
        for n, g in enumerate(groups):
            e = ex(*g)
            nf = fm(*groups[n+1]) if n+1 < len(groups) else []
            pc = cv(*groups[n-1]) if n >= 1 else []
            po = out(*groups[n-2]) if n >= 2 else []
            rest = po + pc + nf
            k = 0
            for q in range(0, 8, 2):
                s.i(e[q]); s.i(e[q+1])
                tgt = (len(rest)*(q+2) + 7)//8
                while k < tgt: s.emit(rest[k]); k += 1
        for x in out(*groups[-2]): s.emit(x)
        for x in cv(*groups[-1]): s.i(x)
        for x in out(*groups[-1]): s.emit(x)
        for rt in range(3): s.i(f'ds_write_b32 v250, v{self.LACC+4*rt} offset:{loff + rt*256}', 'lw')

    def prologue(self):
        s = Stream('P')
        s.i('s_cmp_ge_u32 s2, 256\ns_cbranch_scc1 L_end0')
        for n, d in enumerate([4, 8, 12, 16, 20, 24, 32, 28]):
            s.i(f's_load_dwordx2 s[{d}:{d+1}], s[0:1], {8*n}')
        s.i('v_lshrrev_b32 v1, 6, v0\nv_and_b32 v0, 63, v0')
        for d, n in [(4, 384*2048), (8, 8<<20), (12, 8<<20), (16, 8<<20), (20, 8<<20), (24, 384*2048), (28, 256<<20)]:
            s.i(f's_mov_b32 s{d+2}, {n}\ns_mov_b32 s{d+3}, 0x20000')
        s.i('v_readfirstlane_b32 s3, v1')
        s.i(f's_and_b32 {sHKV}, s2, 3\ns_bfe_u32 {sBH}, s2, 0x10002\ns_lshr_b32 {sBL}, s2, 6\ns_bfe_u32 {sJ}, s2, 0x30003')
        s.i(f's_lshl2_add_u32 {sB}, {sBH}, {sBL}\ns_lshl2_add_u32 {sG}, {sB}, {sHKV}\ns_lshl3_add_u32 {sL}, {sG}, {sJ}')
        s.i(f's_and_b32 {sW}, s3, 3\nv_lshlrev_b32 v1, 4, v0')
        self.row_voff(s, 2, 3, 11)
        s.i('s_cmp_ge_u32 s3, 4\ns_cbranch_scc1 L_roleB')
        return s

    def roleA(self, s):
        self.stamp(s, 'entry')
        R = 4
        self.w_col(s, 7)
        s.i('v_bfe_u32 v8, v0, 3, 2\nv_lshrrev_b32 v9, 5, v0\nv_lshl_or_b32 v8, v9, 3, v8\nv_lshl_or_b32 v3, v8, 13, v7')
        for i, base in [(1, 16), (2, 4), (3, 20)]: s.i(f'v_add_u32 v{3+i}, {base*8192 - i*1024}, v3')
        s.i(f's_lshl_b32 {sRING}, {sW}, 14\ns_add_u32 {sRING}, {sRING}, {L_WQ}')
        s.i(f's_and_b32 {sT0}, {sW}, 1\ns_lshl_b32 s34, {sT0}, 19\ns_lshl3_add_u32 {sT0}, {sHKV}, {sJ}\ns_lshl_b32 {sT0}, {sT0}, 8\ns_add_u32 s34, s34, {sT0}')
        s.i(f's_lshr_b32 {sT0}, {sW}, 1\ns_lshl_b32 {sT0}, {sT0}, 7\ns_add_u32 s34, s34, {sT0}')
        def tab(t):
            self.ord_t(s, f's{TAB+t}', t)
            s.i(f's_lshl_b32 s{TAB+t}, s{TAB+t}, 20\ns_add_u32 s{TAB+t}, s{TAB+t}, s34')
        tab(0); tab(1)
        xl = self.x_loads(s, 0)
        s.i('s_waitcnt lgkmcnt(0)')
        for a, b, c in xl: s.i(a); s.i(b); s.i(c, 'x')
        wq_off = lambda k: f's{TAB+(k>>1)}' if k % 2 == 0 else (f's{TAB+(k>>1)}', 32*8192)
        for k in range(R):
            for it in self.w_dma(WQ, k % R, wq_off(k), f'w{k}'): s.emit(it)
        for t in range(2, 8): tab(t)
        self.tr_addr(s, 12)
        self.sw_base(s, 13, 14)
        s.i(f's_and_b32 {sT0}, {sW}, 1\ns_lshl_b32 {sT0}, {sT0}, 7\nv_xor_b32 v11, {sT0}, v13\nv_xor_b32 v12, 64, v11')
        c = struct.unpack('<I', struct.pack('<f', math.log2(math.e) / math.sqrt(128)))[0]
        s.i(f's_mov_b32 {sC}, {c:#x}')
        s.i(f's_lshl_b32 {sT0}, {sG}, 9\ns_add_u32 s68, s28, {sT0}\ns_addc_u32 s69, s29, 0')
        s.wait(vm='x'); s.i('s_barrier')
        self.stamp(s, 'b0')
        WB = [64, 92]; XB = [80, 108]
        def reads(k):
            t, sub = k >> 1, k & 1
            it = []
            if k == 8: it += ['v_add_u32 v11, 49152, v11', 'v_add_u32 v12, 49152, v12']
            it += [(f'ds_read_b128 {vr(XB[k&1]+4*rt,4)}, v{11+sub} offset:{L_X + (t&3)*12288 + rt*4096}', f'r{k}') for rt in range(3)]
            return it + self.w_reads(WB[k & 1], k % R, f'r{k}')
        s.wait(vm='w0')
        for it in reads(0): s.emit(it)
        for k in range(16):
            s.wait(lg=f'r{k}')
            fill = []
            if k + R < 16: fill += self.w_dma(WQ, k % R, wq_off(k+R), f'w{k+R}')
            if k + R == 15: fill += ['s_barrier']
            if k + 1 < 16: fill += [{'vm': f'w{k+1}'}] + reads(k+1)
            s.weave(self.g_mfmas(WB[k&1], XB[k&1], k == 0), fill)
        self.stamp(s, 'T1')
        if self.fast:
            s.i(f's_lshl_b32 {sT0}, {sG}, 3\ns_add_u32 s34, s32, {sT0}\ns_addc_u32 s35, s33, 0\ns_load_dwordx2 s[{POLL}:{POLL+1}], s[34:35], 0 glc')
        s.i(f'v_add_u32 v15, {sRING}, v1\ns_xor_b32 {sT0}, {sRING}, 0x4000\nv_add_u32 v14, {sT0}, v1')
        for n in range(6): s.i(f'ds_write_b128 v15, {vr(40+4*n,4)} offset:{n*1024}', 'pw')
        s.i('s_waitcnt lgkmcnt(0)\ns_barrier')
        for n in range(6): s.i(f'ds_read_b128 {vr(64+4*n,4)}, v14 offset:{n*1024}', f'pr{n}')
        if self.fast:
            s.i(f's_getreg_b32 {sT0}, hwreg(HW_REG_XCC_ID)\ns_and_b32 {sT0}, {sT0}, 15\ns_or_b32 {sT0}, {sT0}, 0x80\ns_mul_i32 {sT0}, {sT0}, 0x01010101')
            s.i(f's_mov_b32 {sT1}, {sT0}\ns_cmp_eq_u64 s[{POLL}:{POLL+1}], s[56:57]\ns_cselect_b32 {sFAST}, 1, 0')
        s.i(f'v_bfe_u32 v15, v0, 5, 1\nv_and_b32 v14, 15, v0\nv_lshlrev_b32 v14, 4, v14\nv_lshl_or_b32 v15, v15, 8, v14\nv_bfe_u32 v14, v0, 4, 1\nv_lshl_or_b32 v15, v14, 3, v15')
        s.i(f's_mul_i32 {sT0}, {sW}, 3072\ns_add_u32 {sT0}, {sT0}, {L_Q}\nv_add_u32 v15, {sT0}, v15\nv_add_u32 v14, {sT0}, v1')
        for n in range(6):
            s.wait(lg=f'pr{n}')
            a, r = 16 + 4*n, 64 + 4*n
            for e in range(4): s.i(f'v_add_f32 v{a+e}, v{a+e}, v{r+e}')
            s.i(f'v_cvt_pk_bf16_f32 v{a}, v{a}, v{a+1}\nv_cvt_pk_bf16_f32 v{a+1}, v{a+2}, v{a+3}')
            s.i(f'ds_write_b64 v15, {vr(a,2)} offset:{(n%3)*1024 + (n//3)*512}', 'qw')
        for rt in range(3): s.i(f'ds_read_b128 {vr(88+4*rt,4)}, v14 offset:{rt*1024}', 'qo')
        s.i(f's_mul_i32 {sT1}, {sL}, 12288\ns_mul_i32 {sT2}, {sW}, 3072\ns_add_u32 {sT1}, {sT1}, {sT2}\ns_add_u32 {sT1}, {sT1}, {WS_Q}')
        s.i('s_waitcnt lgkmcnt(0)')
        self.xstores(s, [f'buffer_store_dwordx4 {vr(88+4*rt,4)}, v1, {WS}, {sT1} offen offset:{rt*1024}' for rt in range(3)], 'qs')
        s.i('s_barrier')
        s.i(f'v_add_u32 v15, {L_Q}, v1')
        for n in range(12): s.i(f'ds_read_b128 {vr(16+4*n,4)}, v15 offset:{n*1024}', 'q')
        s.i(f's_lshl_b32 {sT0}, {sW}, 13\nv_add_u32 v11, {sT0}, v13')
        for u in range(1, 4): s.i(f'v_xor_b32 v{11+u}, {u<<6}, v11')
        s.i(f's_mul_i32 {sRING}, {sW}, 12288')
        if L_V: s.i(f's_add_u32 {sRING}, {sRING}, {L_V}')
        self.tr_addr(s, 252)
        self.w_col(s, 252)
        s.i('v_lshrrev_b32 v253, 3, v0\nv_lshl_or_b32 v3, v253, 8, v252')
        for i in range(1, 4): s.i(f'v_add_u32 v{3+i}, {1024*i}, v3')
        s.i(f's_lshl_b32 s34, {sG}, 18\ns_and_b32 {sT0}, {sJ}, 1\ns_lshl_b32 {sT0}, {sT0}, 17\ns_add_u32 s34, s34, {sT0}')
        s.i(f's_and_b32 {sT0}, {sW}, 1\ns_lshl_b32 {sT0}, {sT0}, 14\ns_add_u32 s34, s34, {sT0}\ns_lshr_b32 {sT0}, {sW}, 1\ns_lshl_b32 {sT0}, {sT0}, 7\ns_add_u32 s34, s34, {sT0}')
        for t in range(4):
            s.i(f's_lshr_b32 {sT0}, {sJ}, 1\ns_add_u32 {sT0}, {sT0}, {t}\ns_and_b32 {sT0}, {sT0}, 3\ns_lshl_b32 {sT0}, {sT0}, 15\ns_add_u32 s{TAB+t}, {sT0}, s34')
        v_off = lambda k: f's{TAB+(k>>1)}' if k % 2 == 0 else (f's{TAB+(k>>1)}', 8192)
        self.misc_addr(s)
        s.wait(vm='qs')
        self.flag(s, 0, 'qf')
        s.i('s_waitcnt lgkmcnt(0)')
        self.stamp(s, 'qflag')
        RV = 3
        for t in range(4):
            s.i('s_barrier')
            if t == 0: self.stamp(s, 'bK0')
            if t == 3: self.stamp(s, 'bK3')
            if t == 2:
                for u in range(4): s.i(f'v_add_u32 v{11+u}, {L_K[2]}, v{11+u}')
            for it in self.k_reads(t): s.emit(it)
            fill = []
            if t == 2: fill += self.w_dma(V, 0, v_off(0), 'v0') + self.w_dma(V, 1, v_off(1), 'v1')
            if t == 3: fill += self.w_dma(V, 2, v_off(2), 'v2')
            if t > 0: fill += self.max_ops(t-1)
            mm = self.qk_mfmas(t); main = []
            for u in range(4): main += [{'lg': f'k{t}_{u}'}] + mm[6*u:6*u+6]
            s.weave(main, fill, start=1)
        s.i(f'v_mov_b32 v252, 0\nds_write_b32 v250, v252 offset:{M_FLG}', 'fz')
        for x in self.max_ops(3): s.i(x)
        self.max_publish(s, M_MAXA)
        s.i('s_waitcnt lgkmcnt(0)\ns_barrier')
        self.stamp(s, 'bmaxA')
        self.max_fetch(s, M_MAXA, self.MC)
        self.exp_phase(s, L_PA, M_LA)
        s.i('s_waitcnt lgkmcnt(0)\ns_barrier')
        self.stamp(s, 'bPA')
        PF = [192, 204]
        s.i(f's_and_b32 {sT0}, {sW}, 1\ns_mul_i32 {sT0}, {sT0}, 6144\ns_add_u32 {sT0}, {sT0}, {L_PA}\nv_add_u32 v15, {sT0}, v1')
        def p_reads(k, tag): return [(f'ds_read_b128 {vr(PF[k&1]+4*rt,4)}, v15 offset:{(k>>1)*12288 + (k&1)*3072 + rt*1024}', tag) for rt in range(3)]
        T = self.TMP
        for rt in range(3): s.i(f'ds_read_b128 {vr(T+4*rt,4)}, v251 offset:{M_LA + rt*256}', 'la')
        for it in p_reads(0, 'a0'): s.emit(it)
        s.wait(vm='v0')
        for it in self.w_reads(64, 0, 'a0'): s.emit(it)
        st = []
        for rt in range(3):
            r = T + 4*rt
            st += [f'v_add_f32 v{r}, v{r}, v{r+1}', f'v_add_f32 v{r+2}, v{r+2}, v{r+3}', f'v_add_f32 v{r}, v{r}, v{r+2}',
                   f'v_rcp_f32 v{232+rt}, v{r}', f'v_log_f32 v{r}, v{r}']
        st += [f'v_add_f32 v{228+rt}, v{T+4*rt}, v{self.MC+rt}' for rt in range(3)]
        for k in range(8):
            s.wait(lg=f'a{k}')
            fill = []
            if k + RV < 8: fill += self.w_dma(V, k % RV, v_off(k+RV), f'v{k+RV}')
            if k + 1 < 8: fill += p_reads(k+1, f'a{k+1}') + [{'vm': f'v{k+1}'}] + self.w_reads(64+16*(k+1), (k+1) % RV, f'a{k+1}')
            if k == 7: fill += st
            s.weave(self.g_mfmas(64+16*k, PF[k&1], k == 0, (2, 3, 0, 1) if k == 7 else (0, 1, 2, 3)), fill)
        s.i(f'v_add_u32 v14, {sRING}, v1\ns_xor_b32 {sT0}, {sW}, 1\ns_mul_i32 {sT0}, {sT0}, 12288')
        if L_V: s.i(f's_add_u32 {sT0}, {sT0}, {L_V}')
        s.i(f'v_add_u32 v13, {sT0}, v1')
        for n in range(6): s.i(f'ds_write_b128 v14, {vr(40+4*n,4)} offset:{n*1024}', 'pw')
        s.i(f'v_add_u32 v15, {L_PB - L_PA}, v15' if L_PB > L_PA else f'v_subrev_u32 v15, {L_PA - L_PB}, v15')
        s.i('s_waitcnt lgkmcnt(0)\ns_barrier')
        self.stamp(s, 'bPB')
        RC = 192
        for n in range(6): s.i(f'ds_read_b128 {vr(RC+4*n,4)}, v13 offset:{n*1024}', f'pr{n}')
        for n in range(6):
            s.wait(lg=f'pr{n}')
            for e in range(4): s.i(f'v_add_f32 v{16+4*n+e}, v{16+4*n+e}, v{RC+4*n+e}')
        for it in p_reads(0, 'c0'): s.emit(it)
        for n in range(6):
            a = 16 + 4*n; rt = n % 3; d = 216 + 4*rt + 2*(n//3)
            for e in range(4): s.i(f'v_mul_f32 v{a+e}, v{a+e}, v{232+rt}')
            s.i(f'v_cvt_pk_bf16_f32 v{d}, v{a}, v{a+1}\nv_cvt_pk_bf16_f32 v{d+1}, v{a+2}, v{a+3}')
        s.i(f's_lshl2_add_u32 {sT1}, {sL}, {sW}\ns_lshl_b32 {sT1}, {sT1}, 12\ns_add_u32 {sT1}, {sT1}, {WS_PO}')
        self.xstores(s, [f'buffer_store_dwordx4 {vr(216+4*n,4)}, v1, {WS}, {sT1} offen offset:{n*1024}' for n in range(4)], 'pos')
        FK = self.opt.get('poflag_k', 4)
        st = [(f'ds_read_b128 {vr(T+4*rt,4)}, v251 offset:{M_MAXB + rt*256}', 'sb') for rt in range(3)] + [{'lg': 'sb'}]
        for rt in range(3):
            r = T + 4*rt
            st += [f'v_max3_f32 v{r}, v{r}, v{r+1}, v{r+2}', f'v_max_f32 v{r}, v{r}, v{r+3}', f'v_mul_f32 v{self.MC+rt}, {sC}, v{r}']
        st2 = [(f'ds_read_b128 {vr(T+4*rt,4)}, v251 offset:{M_LB + rt*256}', 'sc') for rt in range(3)] + [{'lg': 'sc'}]
        for rt in range(3):
            r = T + 4*rt
            st2 += [f'v_add_f32 v{r}, v{r}, v{r+1}', f'v_add_f32 v{r+2}, v{r+2}, v{r+3}', f'v_add_f32 v{r}, v{r}, v{r+2}',
                    f'v_rcp_f32 v{232+rt}, v{r}', f'v_log_f32 v{r}, v{r}']
        st2 += [f'v_add_f32 v{self.MC+rt}, v{T+4*rt}, v{self.MC+rt}' for rt in range(3)]
        for k in range(8):
            s.wait(lg=f'c{k}')
            fill = []
            if k + 1 < 8: fill += p_reads(k+1, f'c{k+1}')
            if k == 1: fill += st
            if k == 2: fill += st2
            s.weave(self.g_mfmas(64+16*k, PF[k&1], k == 0, (2, 3, 0, 1) if k == 7 else (0, 1, 2, 3)), fill)
            if k == FK:
                s.wait(vm='pos'); self.flag(s, 1, 'pof')
        for n in range(6): s.i(f'ds_write_b128 v14, {vr(40+4*n,4)} offset:{6144 + n*1024}', 'pw')
        s.i(f'v_mov_b32 v252, 1\nds_write_b32 v250, v252 offset:{M_FLG}', 'fw')
        self.stamp(s, 'PVB')
        s.i(f's_xor_b32 {sT2}, {sJ}, 1\ns_lshl_b32 {sT2}, {sT2}, 2\ns_add_u32 s34, s68, {sT2}\ns_addc_u32 s35, s69, 0')
        s.i(f's_lshl_b32 {sT2}, {sW}, 3\ns_lshl_b32 {sT2}, 1, {sT2}')
        self.poll(s, 's[34:35]', 128, 1, sT2, sT2)
        s.i(f's_xor_b32 {sT1}, {sL}, 1\ns_lshl2_add_u32 {sT1}, {sT1}, {sW}\ns_lshl_b32 {sT1}, {sT1}, 12\ns_add_u32 {sT1}, {sT1}, {WS_PO}')
        for n in [3, 0, 1, 2]: s.i(f'buffer_load_dwordx4 {vr(216+4*n,4)}, v1, {WS}, {sT1} offen offset:{n*1024} sc1', f'pol{n}')
        lp = self.lab('pair')
        s.i(f'v_xor_b32 v253, 4, v250\ns_mov_b32 {sCNT}, 0')
        s.i(f'{lp}:')
        s.i(f's_add_u32 {sCNT}, {sCNT}, 1\ns_cmp_gt_u32 {sCNT}, {SPIN_MAX}\ns_cbranch_scc1 L_end')
        s.i(f'ds_read_b32 v252, v253 offset:{M_FLG}', 'fr')
        for n in range(6): s.i(f'ds_read_b128 {vr(RC+4*n,4)}, v13 offset:{6144 + n*1024}', 'pr')
        s.i(f's_waitcnt lgkmcnt(0)\nv_readfirstlane_b32 {sT0}, v252\ns_cmp_eq_u32 {sT0}, 1\ns_cbranch_scc0 {lp}')
        for n in range(24): s.i(f'v_add_f32 v{16+n}, v{16+n}, v{RC+n}')
        s.wait(vm='pol3')
        self.stamp(s, 'pogot')
        for rt in range(3):
            s.i(f'v_sub_f32 v{240+rt}, v{self.MC+rt}, v{228+rt}')
        for rt in range(3): s.i(f'v_exp_f32 v{240+rt}, v{240+rt}')
        for rt in range(3): s.i(f'v_add_f32 v{240+rt}, 1.0, v{240+rt}')
        for rt in range(3): s.i(f'v_rcp_f32 v{240+rt}, v{240+rt}')
        for rt in range(3): s.i(f'v_sub_f32 v{243+rt}, v{228+rt}, v{self.MC+rt}')
        for rt in range(3): s.i(f'v_exp_f32 v{243+rt}, v{243+rt}')
        for rt in range(3): s.i(f'v_add_f32 v{243+rt}, 1.0, v{243+rt}')
        for rt in range(3): s.i(f'v_rcp_f32 v{243+rt}, v{243+rt}')
        for rt in range(3): s.i(f'v_mul_f32 v{232+rt}, v{232+rt}, v{243+rt}')
        for n in range(24): s.i(f'v_mul_f32 v{16+n}, v{16+n}, v{232+(n//4)%3}')
        for rt in range(3):
            s.wait(vm=f'pol{rt}')
            for tt in range(2):
                a = acc(tt, rt); d = 216 + 4*rt + 2*tt
                for h in range(2):
                    s.i(f'v_lshlrev_b32 v246, 16, v{d+h}\nv_and_b32 v247, 0xffff0000, v{d+h}')
                    s.i(f'v_fmac_f32 v{a+2*h}, v246, v{240+rt}\nv_fmac_f32 v{a+2*h+1}, v247, v{240+rt}')
                    s.i(f'v_cvt_pk_bf16_f32 v{d+h}, v{a+2*h}, v{a+2*h+1}')
        s.i(f's_xor_b32 {sT1}, {sL}, 1\ns_mul_i32 {sT1}, {sT1}, 12288\ns_mul_i32 {sT2}, {sW}, 3072\ns_add_u32 {sT1}, {sT1}, {sT2}\ns_add_u32 {sT1}, {sT1}, {WS_O}')
        self.xstores(s, [f'buffer_store_dwordx4 {vr(216+4*rt,4)}, v1, {WS}, {sT1} offen offset:{rt*1024}' for rt in range(3)], 'os')
        self.stamp(s, 'T2')
        s.i(f's_mul_i32 s34, {sG}, {8*12288}\ns_add_u32 s34, s34, {sT2}\ns_add_u32 s34, s34, {WS_O}\ns_mov_b32 {sRING}, {sT2}')
        for t in range(8):
            self.ord_t(s, f's{TAB+t}', t)
            s.i(f's_mul_i32 s{TAB+t}, s{TAB+t}, 12288\ns_add_u32 s{TAB+t}, s{TAB+t}, s34')
        s.wait(vm='os')
        self.flag(s, 2, 'of')
        self.poll(s, sFLG, 256, 8, '0x01010101')
        self.stamp(s, 'oflags')
        def o_dma(t):
            s.i(f's_add_u32 m0, {sRING}, {L_O + t*12288}')
            for rt in range(3): s.i(f'buffer_load_dwordx4 v1, {WS}, s{TAB+t} offen offset:{rt*1024} sc1 lds', f'o{t}')
        for t in range(4): o_dma(t)
        for i in range(4):
            s.wait(vm=f'o{2*i+1}')
            s.i('s_barrier')
            if i < 2: o_dma(2*i+4); o_dma(2*i+5)
        self.stamp(s, 'odone')
        if self.diag: s.i('s_barrier')
        self.dump_stamps(s)
        s.i('s_endpgm')

    def roleB(self, s):
        s.i('L_roleB:')
        self.stamp(s, 'entry')
        skip = self.lab('nopf')
        s.i(f's_cmp_eq_u32 {sW}, 1\ns_cbranch_scc0 {skip}')
        s.i(f's_getpc_b64 s[60:61]\nL_pcref:\ns_sub_u32 s60, s60, L_pcref-{NAME}\ns_subb_u32 s61, s61, 0\ns_mov_b32 s62, L_codeend-{NAME}\ns_mov_b32 s63, 0x20000')
        s.i(f's_lshr_b32 {sT0}, s2, 3\ns_lshl_b32 {sT0}, {sT0}, 11')
        s.out.append(type(s.out[-1])(f'buffer_load_dwordx4 v[16:19], v1, s[60:63], {sT0} offen'))
        s.out.append(type(s.out[-1])(f'buffer_load_dwordx4 v[16:19], v1, s[60:63], {sT0} offen offset:1024'))
        s.i(f'{skip}:')
        s.i('s_waitcnt lgkmcnt(0)')
        s.i(f's_lshl_b32 {sT0}, {sG}, 9\ns_add_u32 s68, s28, {sT0}\ns_addc_u32 s69, s29, 0')
        skip = self.lab('noclr')
        s.i(f's_cmp_eq_u32 {sW}, 0\ns_cbranch_scc0 {skip}')
        s.i(f's_lshl2_add_u32 {sT0}, {sJ}, {sT0}\nv_lshlrev_b32 v3, 7, v0\nv_mov_b32 v4, 0\ns_mov_b64 exec, 15')
        s.out.append(type(s.out[-1])(f'buffer_store_dword v4, v3, {WS}, {sT0} offen sc1'))
        s.i('s_mov_b64 exec, -1')
        s.i(f's_getreg_b32 {sT0}, hwreg(HW_REG_XCC_ID)\ns_and_b32 {sT0}, {sT0}, 15\ns_or_b32 {sT0}, {sT0}, 0x80')
        s.i(f's_and_b32 {sT1}, {sL}, 3\ns_lshl_b32 {sT1}, {sT1}, 3\ns_lshl_b32 {sFAST}, {sT0}, {sT1}')
        s.i(f's_andn2_b32 {sT1}, {sL}, 3\ns_add_u32 s34, s32, {sT1}\ns_addc_u32 s35, s33, 0')
        s.i(f's_waitcnt vmcnt(0)\ns_atomic_or {sFAST}, s[34:35], 0')
        s.i(f'{skip}:')
        for i in range(1, 8):
            for a, b, c in self.x_loads(s, i): s.i(a); s.i(b); s.i(c, 'x')
        c = struct.unpack('<I', struct.pack('<f', math.log2(math.e) / math.sqrt(128)))[0]
        s.i(f's_mov_b32 {sC}, {c:#x}')
        self.row_voff(s, 2, 3, 8)
        self.sw_base(s, 13, 14)
        s.i(f's_lshl_b32 {sT0}, {sW}, 13\nv_add_u32 v11, {sT0}, v13')
        for u in range(1, 4): s.i(f'v_xor_b32 v{11+u}, {u<<6}, v11')
        s.i(f's_lshl_b32 s34, {sG}, 18\ns_and_b32 {sT0}, {sJ}, 1\ns_lshl_b32 {sT0}, {sT0}, 17\ns_add_u32 s34, s34, {sT0}')
        for t in range(4):
            s.i(f's_lshr_b32 {sT0}, {sJ}, 1\ns_add_u32 {sT0}, {sT0}, {t}\ns_and_b32 {sT0}, {sT0}, 3\ns_lshl_b32 {sT0}, {sT0}, 15\ns_add_u32 s{TAB+t}, {sT0}, s34')
        s.i(f's_lshl_b32 {sRING}, {sW}, 10')
        self.misc_addr(s)
        s.i('s_waitcnt vmcnt(0)\ns_barrier')
        self.stamp(s, 'b0')
        for r in range(4): s.i(f'v_mov_b32 v{16+r}, -1')
        s.i(f's_mul_i32 {sT1}, {sL}, 12288\ns_mul_i32 {sT2}, {sW}, 3072\ns_add_u32 {sT1}, {sT1}, {sT2}\ns_add_u32 {sT1}, {sT1}, {WS_S2}')
        for rt in range(3): s.i(f'buffer_store_dwordx4 v[16:19], v1, {WS}, {sT1} offen offset:{rt*1024} sc1', 'clr')
        s.wait(vm='clr')
        self.flag(s, 3, 'cf', always_slow=True)
        def k_dma(t):
            for n in range(8):
                s.i(f's_add_u32 m0, {sRING}, {L_K[t] + n*4096}\ns_add_u32 {sT3}, s{TAB+t}, {n*4096}')
                s.i(f'buffer_load_dwordx4 v2, {K}, {sT3} offen lds', f'K{t}')
        s.i('s_barrier')
        self.stamp(s, 'b1')
        k_dma(0)
        s.i('s_barrier')
        s.i('s_barrier')
        k_dma(1)
        s.i(f's_lshl_b32 {sT0}, {sB}, 5\ns_add_u32 s34, s32, {sT0}\ns_addc_u32 s35, s33, 0')
        self.poll(s, 's[34:35]', 0, 8, '0x80808080', '0x80808080')
        for t in range(4):
            if t == 2:
                s.i(f's_xor_b32 {sT2}, {sJ}, 1\ns_lshl_b32 {sT2}, {sT2}, 2\ns_add_u32 s34, s68, {sT2}\ns_addc_u32 s35, s69, 0')
                s.i(f's_lshl_b32 {sT2}, {sW}, 3\ns_lshl_b32 {sT2}, 1, {sT2}')
                self.poll(s, 's[34:35]', 0, 1, sT2, sT2)
                self.stamp(s, 'qseen')
                s.i(f's_xor_b32 {sT1}, {sL}, 1\ns_mul_i32 {sT1}, {sT1}, 12288\ns_mul_i32 {sT2}, {sW}, 3072\ns_add_u32 {sT1}, {sT1}, {sT2}\ns_add_u32 {sT1}, {sT1}, {WS_Q}')
                s.i(f's_add_u32 m0, {sT2}, {L_Q2}')
                for rt in range(3): s.i(f'buffer_load_dwordx4 v1, {WS}, {sT1} offen offset:{rt*1024} sc1 lds', 'q2')
            s.wait(vm='q2' if t == 3 else f'K{t}')
            s.i('s_waitcnt lgkmcnt(0)\ns_barrier')
            if t < 2: k_dma(t+2)
            if t == 2:
                for u in range(4): s.i(f'v_add_u32 v{11+u}, {L_K[2]}, v{11+u}')
            for it in self.k_reads(t): s.emit(it)
        s.i(f'v_add_u32 v15, {L_Q2}, v1')
        s.wait(lg='k3_1')
        for n in range(12): s.i(f'ds_read_b128 {vr(16+4*n,4)}, v15 offset:{n*1024}', 'q')
        s.i('s_waitcnt lgkmcnt(0)\ns_barrier')
        self.stamp(s, 'bmaxA')
        for t in range(4):
            s.weave(self.qk_mfmas(t), self.max_ops(t-1) if t else [], start=6)
        for x in self.max_ops(3): s.i(x)
        self.max_publish(s, M_MAXB)
        self.stamp(s, 'QKB')
        s.i('s_waitcnt lgkmcnt(0)\ns_barrier')
        self.max_fetch(s, M_MAXB, self.MC)
        self.exp_phase(s, L_PB, M_LB)
        s.i(f's_mul_i32 {sRING}, {sW}, 12288\ns_add_u32 {sRING}, {sRING}, {L_WO}')
        self.tr_addr(s, 252)
        self.w_col(s, 252)
        s.i('v_lshrrev_b32 v253, 3, v0\nv_lshl_or_b32 v3, v253, 11, v252')
        for i in range(1, 4): s.i(f'v_add_u32 v{3+i}, {15360*i}, v3')
        s.i(f's_lshl_b32 s34, {sHKV}, 21\ns_and_b32 {sT0}, {sW}, 1\ns_lshl_b32 {sT0}, {sT0}, 17\ns_add_u32 s34, s34, {sT0}')
        s.i(f's_lshl_b32 {sT0}, {sJ}, 8\ns_add_u32 s34, s34, {sT0}\ns_lshr_b32 {sT0}, {sW}, 1\ns_lshl_b32 {sT0}, {sT0}, 7\ns_add_u32 s34, s34, {sT0}')
        for t in range(8):
            self.ord_t(s, f's{TAB+t}', t)
            s.i(f's_lshl_b32 s{TAB+t}, s{TAB+t}, 18\ns_add_u32 s{TAB+t}, s{TAB+t}, s34')
        wo_off = lambda k: f's{TAB+(k>>1)}' if k % 2 == 0 else (f's{TAB+(k>>1)}', 32*2048)
        self.stamp(s, 'expB')
        s.i('s_waitcnt lgkmcnt(0)\ns_barrier')
        RW, NP = 3, 10
        PK = lambda k: 64 + 16*(k % NP)
        for k in range(RW):
            for it in self.w_dma(WO, k, wo_off(k), f'w{k}'): s.emit(it)
        s.i(f's_lshl2_add_u32 {sT0}, {sB}, {sW}\ns_lshl_b32 {sT0}, {sT0}, 9\ns_lshl2_add_u32 {sT0}, {sJ}, {sT0}\ns_add_u32 s34, s28, {sT0}\ns_addc_u32 s35, s29, 0')
        self.poll(s, 's[34:35]', 384, 1, '0x01010101')
        s.i(f's_and_b32 {sT0}, {sW}, 1\ns_mul_i32 {sT0}, {sT0}, 6144\nv_add_u32 v11, {sT0}, v1')
        if L_O: s.i(f'v_add_u32 v11, {L_O}, v11')
        s.i('v_add_u32 v12, 49152, v11')
        for k in range(NP):
            s.wait(vm=f'w{k}')
            for it in self.w_reads(PK(k), k % RW, f'r{k}'): s.emit(it)
            s.wait(lg=f'r{k}')
            for it in self.w_dma(WO, k % RW, wo_off(k+RW), f'w{k+RW}'): s.emit(it)
        self.stamp(s, 'parked')
        OF = [224, 236]
        def o_reads(k): return [(f'ds_read_b128 {vr(OF[k&1]+4*rt,4)}, v{11+(k>>3)} offset:{((k>>1)&3)*12288 + (k&1)*3072 + rt*1024}', f'o{k}') for rt in range(3)]
        s.i('s_barrier')
        self.stamp(s, 'bO0')
        for it in o_reads(0): s.emit(it)
        late = {1: 10, 2: 11, 3: 12, 7: 13, 8: 14, 9: 15}
        for k in range(16):
            s.wait(lg=f'o{k}')
            if k >= NP: s.wait(lg=f'r{k}')
            fill = []
            if k - 1 in late and late[k-1] + RW < 16:
                kk = late[k-1]
                fill += [{'lg': f'r{kk}'}] + self.w_dma(WO, kk % RW, wo_off(kk+RW), f'w{kk+RW}')
            if k + 1 < 16:
                if (k+1) % 4 == 0: fill += ['s_barrier']
                fill += o_reads(k+1)
            if k in late:
                kk = late[k]
                fill += [{'vm': f'w{kk}'}] + self.w_reads(PK(kk), kk % RW, f'r{kk}')
            s.weave(self.g_mfmas(PK(k), OF[k&1], k == 0, (2, 3, 0, 1) if k == 15 else (0, 1, 2, 3)), fill)
        self.stamp(s, 'P3')
        s.i(f'v_add_u32 v14, {sRING}, v1\ns_xor_b32 {sT0}, {sW}, 1\ns_mul_i32 {sT0}, {sT0}, 12288\ns_add_u32 {sT0}, {sT0}, {L_WO}\nv_add_u32 v13, {sT0}, v1')
        for n in range(6): s.i(f'ds_write_b128 v14, {vr(40+4*n,4)} offset:{n*1024}', 'pw')
        s.i('s_waitcnt lgkmcnt(0)\ns_barrier')
        for n in range(6): s.i(f'ds_read_b128 {vr(64+4*n,4)}, v13 offset:{n*1024}', f'pr{n}')
        for n in range(6):
            s.wait(lg=f'pr{n}')
            for e in range(4): s.i(f'v_add_f32 v{16+4*n+e}, v{16+4*n+e}, v{64+4*n+e}')
        s.i(f's_cmp_eq_u32 {sW}, {sHKV}\ns_cbranch_scc1 L_recv')
        r = s.fork('B')
        for n in range(6):
            a = 16 + 4*n; d = 64 + 4*(n % 3) + 2*(n//3)
            s.i(f'v_cvt_pk_bf16_f32 v{d}, v{a}, v{a+1}\nv_cvt_pk_bf16_f32 v{d+1}, v{a+2}, v{a+3}')
        for n in range(12): s.i(f'v_min_u32 v{64+n}, -2, v{64+n}')
        s.i(f's_lshl2_add_u32 {sT1}, {sB}, {sW}\ns_lshl3_add_u32 {sT1}, {sT1}, {sJ}\ns_mul_i32 {sT1}, {sT1}, 12288\ns_mul_i32 {sT2}, {sHKV}, 3072\ns_add_u32 {sT1}, {sT1}, {sT2}\ns_add_u32 {sT1}, {sT1}, {WS_S2}')
        for rt in range(3): s.i(f'buffer_store_dwordx4 {vr(64+4*rt,4)}, v1, {WS}, {sT1} offen offset:{rt*1024} sc1', 's2')
        saved = list(self.stamps['B'])
        self.stamp(s, 'sent'); self.stamp(s, 'got'); self.stamp(s, 'end')
        self.dump_stamps(s)
        s.i('s_endpgm')
        self.stamps['B'] = saved
        r.i('L_recv:')
        self.stamp(r, 'sent')
        r.i(f's_mul_i32 {sT1}, {sL}, 12288\ns_add_u32 {sT1}, {sT1}, {WS_S2}')
        for n in range(1, 4):
            r.i(f's_add_u32 {sT0}, {sHKV}, {n}\ns_and_b32 {sT0}, {sT0}, 3\ns_mul_i32 {sT0}, {sT0}, 3072\ns_add_u32 s{TAB+n}, {sT0}, {sT1}')
        r.i('v_and_b32 v2, 15, v0\nv_lshlrev_b32 v2, 11, v2\nv_bfe_u32 v3, v0, 4, 1\nv_lshl_or_b32 v2, v3, 5, v2\nv_lshrrev_b32 v3, 5, v0\nv_lshl_or_b32 v2, v3, 4, v2')
        r.i(f's_mul_i32 s{TAB+4}, {sB}, {48*2048}\ns_lshl_b32 {sT0}, {sJ}, 8\ns_add_u32 s{TAB+4}, s{TAB+4}, {sT0}\ns_lshl_b32 {sT0}, {sHKV}, 6\ns_add_u32 s{TAB+4}, s{TAB+4}, {sT0}')
        r.i(f's_add_u32 s{TAB+5}, s{TAB+4}, {16*2048}\ns_add_u32 s{TAB+6}, s{TAB+4}, {32*2048}')
        lp = self.lab('s2')
        r.i(f's_mov_b32 {sCNT}, 0')
        r.i(f'{lp}:')
        r.i(f's_add_u32 {sCNT}, {sCNT}, 1\ns_cmp_gt_u32 {sCNT}, {SPIN_MAX}\ns_cbranch_scc1 L_end')
        for n in range(3):
            for rt in range(3): r.i(f'buffer_load_dwordx4 {vr(64+12*n+4*rt,4)}, v1, {WS}, s{TAB+1+n} offen offset:{rt*1024} sc1', 'in')
        r.i('s_waitcnt vmcnt(0)')
        r.i('v_max3_u32 v4, v64, v65, v66\nv_max3_u32 v5, v67, v68, v69')
        for n in range(70, 100, 4):
            r.i(f'v_max3_u32 v4, v4, v{n}, v{n+1}')
            if n + 3 < 100: r.i(f'v_max3_u32 v5, v5, v{n+2}, v{n+3}')
        r.i(f'v_max_u32 v4, v4, v5\nv_cmp_eq_u32 vcc, -1, v4\ns_nop 4\ns_cbranch_vccnz {lp}')
        self.stamp(r, 'got')
        for rt in range(3):
            for n in range(3):
                for tt in range(2):
                    a = acc(tt, rt); d = 64 + 12*n + 4*rt + 2*tt
                    for h in range(2):
                        r.i(f'v_lshlrev_b32 v4, 16, v{d+h}\nv_and_b32 v5, 0xffff0000, v{d+h}')
                        r.i(f'v_add_f32 v{a+2*h}, v{a+2*h}, v4\nv_add_f32 v{a+2*h+1}, v{a+2*h+1}, v5')
            o = 100 + 4*rt
            for tt in range(2):
                a = acc(tt, rt)
                r.i(f'v_cvt_pk_bf16_f32 v{o+2*tt}, v{a}, v{a+1}\nv_cvt_pk_bf16_f32 v{o+2*tt+1}, v{a+2}, v{a+3}')
            r.i(f'v_permlane16_swap_b32 v{o}, v{o+2}\nv_permlane16_swap_b32 v{o+1}, v{o+3}')
            r.i(f'buffer_store_dwordx4 {vr(o,4)}, v2, {OUT}, s{TAB+4+rt} offen', 'out')
        if self.diag: r.i('s_waitcnt vmcnt(0)')
        self.stamp(r, 'end')
        self.dump_stamps(r)
        r.i('L_end:\ns_endpgm')
        return r

    def build(self):
        p = self.prologue()
        a = p.fork('A'); b = p.fork('B')
        self.roleA(a)
        r = self.roleB(b)
        o = [HDR, '; @launch grid=(256,1,1) block=(512,1,1) lds=163840',
             '.amdgcn_target "amdgcn-amd-amdhsa--gfx950"', '.text', f'.globl {NAME}', '.p2align 8', f'.type {NAME},@function', f'{NAME}:',
             p.text(), a.text(), 'L_end0:\n    s_endpgm', b.text(), r.text(), 'L_codeend:',
             f'''.section .rodata,"a"
.p2align 6
.amdhsa_kernel {NAME}
  .amdhsa_next_free_vgpr 256
  .amdhsa_next_free_sgpr 102
  .amdhsa_accum_offset 256
  .amdhsa_group_segment_fixed_size 0
  .amdhsa_kernarg_size 64
  .amdhsa_user_sgpr_count 2
  .amdhsa_user_sgpr_kernarg_segment_ptr 1
  .amdhsa_system_sgpr_workgroup_id_x 1
.end_amdhsa_kernel''']
        self.nops = (a.nops, b.nops, r.nops)
        return '\n'.join(o) + '\n'

if __name__ == '__main__':
    g = Gen(diag='diag' in sys.argv, fast='slow' not in sys.argv)
    t = g.build()
    out = [a for a in sys.argv[1:] if a.endswith('.s')]
    open(out[0] if out else 'k.s', 'w').write(t)
    print('nops', g.nops, 'lines', t.count('\n'), g.stamps)
```

```python
import math, struct, sys
from asmlib import Stream

NAME = 'standalone__gqa_block_cached__near_ridge_kernel'
HDR = open('standalone__gqa_block_cached__near_ridge.s.ref').read().split('; Override launch')[0].rstrip()

WS_FLAGS, WS_OFL, WS_Q, WS_PO, WS_O, WS_S2, WS_STAMP = 0, 0x8000, 0x10000, 0x400000, 0x800000, 0xC00000, 0x1000000
L_X = 0; L_WQ = 98304
L_K = [0, 32768, 98304, 131072]
L_EARLY = 65536; L_Q = 69632; L_Q2 = 81920
L_V = 0; L_MISC = 49152
L_PB = 65536; L_PA = 114688
L_WO = 114688; L_O = 0
M_MAXA, M_MAXB, M_LA, M_LB, M_FLG = 0, 768, 1536, 2304, 3072
L_DONE = 98304
X, K, V, WQ, WO, OUT, WS = 's[4:7]', 's[8:11]', 's[12:15]', 's[16:19]', 's[20:23]', 's[24:27]', 's[28:31]'
sW, sHKV, sBH, sBL, sJ, sB, sG, sL = 's36', 's37', 's38', 's39', 's40', 's41', 's42', 's43'
sRING, sC, sCNT, sFAST = 's44', 's45', 's46', 's47'
TAB = 48
sT0, sT1, sT2, sT3 = 's56', 's57', 's58', 's59'
POLL = 60
sFLG = 's[68:69]'
STAMP0 = 70
SPIN_MAX = 1 << 20

def vr(a, n): return f'v[{a}:{a+n-1}]'
def mfma(d, a, b, c=None):
    return f'v_mfma_f32_16x16x32_bf16 {vr(d,4)}, {vr(a,4)}, {vr(b,4)}, {vr(c,4) if c is not None else 0}'
ACC = 16
def acc(t, rt): return ACC + (t*3 + rt)*4

class Gen:
    def __init__(self, diag=False, fast=True, **opt):
        self.diag = diag; self.fast = fast; self.opt = opt
        self.nlab = 0
        self.stamps = {'A': [], 'B': []}

    def lab(self, p):
        self.nlab += 1
        return f'L_{p}_{self.nlab}'

    def stamp(self, s, name):
        if not self.diag: return
        foc = self.opt.get('focus')
        if ':' in name:
            if name.split(':')[0] != foc: return
        elif foc and name not in ('entry', 'sent', 'got', 'end') and name not in self.opt.get('keep', '').split(','): return
        l = self.stamps[s.name]; n = len(l); l.append(name)
        assert n < 16
        s.i(f'{"s_memtime" if (name.startswith("cyc") or self.opt.get("cyc")) else "s_memrealtime"} s[{STAMP0+2*n}:{STAMP0+2*n+1}]')

    def dump_stamps(self, s):
        if not self.diag: return
        n = len(self.stamps[s.name])
        s.i('s_waitcnt vmcnt(0) lgkmcnt(0)')
        s.i(f's_lshl_b32 {sT0}, s2, 3\ns_add_u32 {sT0}, {sT0}, {sW}')
        if s.name == 'B': s.i(f's_add_u32 {sT0}, {sT0}, 4')
        s.i(f's_lshl_b32 {sT0}, {sT0}, 7\ns_add_u32 {sT0}, {sT0}, {WS_STAMP}\nv_mov_b32 v1, 0')
        for k in range(n):
            s.i(f'v_mov_b32 v2, s{STAMP0+2*k}\nbuffer_store_dword v2, v1, {WS}, {sT0} offen offset:{4*k}\ns_waitcnt vmcnt(0)')

    def poll(self, s, base, off, n, want, mask=None):
        lp = self.lab('poll')
        s.i('s_waitcnt lgkmcnt(0)')
        s.i(f's_mov_b32 {sCNT}, 0')
        s.i(f'{lp}:')
        s.i(f's_add_u32 {sCNT}, {sCNT}, 1\ns_cmp_gt_u32 {sCNT}, {SPIN_MAX}\ns_cbranch_scc1 L_end')
        if n == 1: s.i(f's_load_dword s{POLL}, {base}, {off} glc')
        else: s.i(f's_load_dwordx{n} s[{POLL}:{POLL+n-1}], {base}, {off} glc')
        s.i('s_waitcnt lgkmcnt(0)')
        if n == 8:
            s.i(f's_and_b64 s[{POLL}:{POLL+1}], s[{POLL}:{POLL+1}], s[{POLL+2}:{POLL+3}]')
            s.i(f's_and_b64 s[{POLL+4}:{POLL+5}], s[{POLL+4}:{POLL+5}], s[{POLL+6}:{POLL+7}]')
            s.i(f's_and_b64 s[{POLL}:{POLL+1}], s[{POLL}:{POLL+1}], s[{POLL+4}:{POLL+5}]')
            s.i(f's_and_b32 s{POLL}, s{POLL}, s{POLL+1}')
        if mask is not None: s.i(f's_and_b32 s{POLL}, s{POLL}, {mask}')
        s.i(f's_cmp_eq_u32 s{POLL}, {want}\ns_cbranch_scc0 {lp}')

    def xstores(self, s, items, tag):
        if not self.fast:
            for t in items: s.i(t + ' sc1', tag)
            return
        a, b = self.lab('slow'), self.lab('join')
        s.i(f's_cmp_eq_u32 {sFAST}, 0\ns_cbranch_scc1 {a}')
        for t in items: s.out.append(type(s.out[-1])(t))
        s.i(f's_branch {b}\n{a}:')
        for t in items: s.i(t + ' sc1', tag)
        s.i(f'{b}:')

    def flag(self, s, kind, tag, always_slow=False):
        s.i(f'v_mov_b32 v254, 0\nv_mov_b32 v255, 1')
        if kind == 'o':
            s.i(f's_lshl2_add_u32 {sT0}, {sG}, {sW}\ns_lshl_b32 {sT0}, {sT0}, 7\ns_lshl2_add_u32 {sT0}, {sJ}, {sT0}\ns_add_u32 {sT0}, {sT0}, {WS_OFL}')
            off = 0
        else:
            s.i(f's_lshl_b32 {sT0}, {sL}, 7\ns_add_u32 {sT0}, {sT0}, {sW}')
            off = kind*4
        s.i('s_mov_b64 exec, 1')
        st = f'buffer_store_byte v255, v254, {WS}, {sT0} offen offset:{off}'
        if always_slow or self.opt.get('slowflag', 0): s.i(st + ' sc1', tag)
        else: self.xstores(s, [st], tag)
        s.i('s_mov_b64 exec, -1')

    def w_dma(self, srd, slot, soff, tag):
        it = [f's_add_u32 m0, {sRING}, {slot*4096}']
        if isinstance(soff, tuple):
            it.append(f's_add_u32 {sT3}, {soff[0]}, {soff[1]}'); soff = sT3
        for i in range(4):
            it.append((f'buffer_load_dwordx4 v{3+i}, {srd}, {soff} offen offset:{i*1024} lds', tag))
        return it

    def w_reads(self, dst, slot, tag):
        it = []
        for t in range(4):
            it.append((f'ds_read_b64_tr_b16 {vr(dst+4*t,2)}, v{7+t} offset:{slot*4096}', tag))
            it.append((f'ds_read_b64_tr_b16 {vr(dst+4*t+2,2)}, v{7+t} offset:{slot*4096+2048}', tag))
        return it

    def g_mfmas(self, wreg, breg, first, order=(0, 1, 2, 3)):
        return [mfma(acc(t, rt), wreg+4*t, breg+4*rt, None if first else acc(t, rt)) for t in order for rt in range(3)]

    def tr_addr(self, s, tmp):
        s.i(f'v_lshrrev_b32 v{tmp}, 2, v0')
        s.i(f'v_bfe_u32 v{tmp+1}, v0, 3, 2')
        s.i(f's_and_b32 {sT0}, {sW}, 1\ns_lshl_b32 {sT0}, {sT0}, 1')
        s.i(f'v_xor_b32 v{tmp+1}, {sT0}, v{tmp+1}')
        s.i(f'v_lshlrev_b32 v{tmp+1}, 5, v{tmp+1}')
        s.i(f'v_lshl_or_b32 v{tmp}, v{tmp}, 7, v{tmp+1}')
        s.i(f'v_and_b32 v{tmp+1}, 3, v0\nv_lshl_or_b32 v{tmp}, v{tmp+1}, 3, v{tmp}')
        for t in range(4):
            s.i(f'v_xor_b32 v{tmp+1}, {t<<5}, v{tmp}\nv_add_u32 v{7+t}, {sRING}, v{tmp+1}')

    def w_col(self, s, dst):
        s.i(f'v_lshrrev_b32 v{dst}, 3, v0\nv_and_b32 v{dst}, 6, v{dst}\nv_xor_b32 v{dst}, v{dst}, v0\nv_and_b32 v{dst}, 7, v{dst}\nv_lshlrev_b32 v{dst}, 4, v{dst}')

    def row_voff(self, s, dst, tmp, shift):
        s.i(f'v_lshrrev_b32 v{tmp}, 4, v0\ns_lshl_b32 {sT0}, {sW}, 2\nv_add_u32 v{tmp}, {sT0}, v{tmp}')
        s.i(f'v_xor_b32 v{dst}, v{tmp}, v0\nv_and_b32 v{dst}, 15, v{dst}\nv_lshlrev_b32 v{dst}, 4, v{dst}')
        s.i(f'v_lshl_or_b32 v{dst}, v{tmp}, {shift}, v{dst}')

    def sw_base(self, s, dst, tmp):
        s.i(f'v_lshrrev_b32 v{tmp}, 4, v0\nv_xor_b32 v{tmp}, v{tmp}, v0\nv_and_b32 v{tmp}, 15, v{tmp}\nv_lshlrev_b32 v{tmp}, 4, v{tmp}')
        s.i(f'v_and_b32 v{dst}, 15, v0\nv_lshl_or_b32 v{dst}, v{dst}, 8, v{tmp}')

    def ord_t(self, s, dst, t):
        s.i(f's_add_u32 {dst}, {sBL}, {t & 3}\ns_and_b32 {dst}, {dst}, 3')
        if t >> 2: s.i(f's_xor_b32 {sT1}, {sBH}, 1\ns_lshl2_add_u32 {dst}, {sT1}, {dst}')
        else: s.i(f's_lshl2_add_u32 {dst}, {sBH}, {dst}')

    def x_loads(self, s, i):
        s.i(f's_add_u32 {sT0}, {sJ}, {i}\ns_and_b32 {sT0}, {sT0}, 7')
        s.i(f's_lshr_b32 {sT1}, {sT0}, 2\ns_xor_b32 {sT1}, {sT1}, {sBH}\ns_sub_u32 {sT2}, {sT0}, {sBL}\ns_and_b32 {sT2}, {sT2}, 3\ns_lshl2_add_u32 {sT1}, {sT1}, {sT2}')
        s.i(f's_mul_i32 {sT1}, {sT1}, 12288\ns_lshl_b32 {sT2}, {sW}, 10\ns_add_u32 {sT1}, {sT1}, {sT2}')
        s.i(f's_lshl_b32 {sT0}, {sT0}, 8\ns_mul_i32 {sT2}, {sB}, {48*2048}\ns_add_u32 {sT0}, {sT0}, {sT2}')
        return [(f's_add_u32 m0, {sT1}, {L_X + rt*4096}', f's_add_u32 {sT2}, {sT0}, {rt*16*2048}',
                 f'buffer_load_dwordx4 v2, {X}, {sT2} offen lds') for rt in range(3)]

    def Kreg(self, t, kt, u): return 64 + 32*t + (kt*4 + u)*4
    def Sreg(self, t, kt, rt): return (192 if t == 0 else 64 + 32*(t-1)) + (kt*3 + rt)*4
    def Qreg(self, u, rt): return 16 + (u*3 + rt)*4
    MX, MC, LACC, ONES, TMP = 232, 235, 216, 228, 238

    def k_reads(self, t):
        return [(f'ds_read_b128 {vr(self.Kreg(t,kt,u),4)}, v{11+u} offset:{L_K[t] - L_K[t & 2] + kt*4096}', f'k{t}_{u}')
                for u in range(4) for kt in range(2)]

    def qk_mfmas(self, t):
        return [mfma(self.Sreg(t,kt,rt), self.Kreg(t,kt,u), self.Qreg(u,rt), None if u == 0 else self.Sreg(t,kt,rt))
                for u in range(4) for kt in range(2) for rt in range(3)]

    def max_ops(self, t):
        it = []
        for kt in range(2):
            for rt in range(3):
                r = self.Sreg(t, kt, rt); m = self.MX + rt
                if t == 0 and kt == 0:
                    it.append(f'v_max3_f32 v{m}, v{r}, v{r+1}, v{r+2}'); it.append(f'v_max_f32 v{m}, v{m}, v{r+3}')
                else:
                    it.append(f'v_max3_f32 v{m}, v{m}, v{r}, v{r+1}'); it.append(f'v_max3_f32 v{m}, v{m}, v{r+2}, v{r+3}')
        return it

    def max_publish(self, s, moff):
        T = self.TMP
        for sw in ('v_permlane32_swap_b32', 'v_permlane16_swap_b32'):
            for rt in range(3): s.i(f'v_mov_b32 v{T+rt}, v{self.MX+rt}')
            for rt in range(3): s.i(f'{sw} v{self.MX+rt}, v{T+rt}')
            for rt in range(3): s.i(f'v_max_f32 v{self.MX+rt}, v{self.MX+rt}, v{T+rt}')
        for rt in range(3): s.i(f'ds_write_b32 v250, v{self.MX+rt} offset:{moff + rt*256}', 'mxw')

    def misc_addr(self, s):
        s.i(f'v_and_b32 v251, 15, v0\nv_lshlrev_b32 v251, 4, v251\nv_add_u32 v251, {L_MISC}, v251')
        s.i(f's_lshl_b32 {sT0}, {sW}, 2\nv_add_u32 v250, {sT0}, v251')

    def max_fetch(self, s, moff, dst):
        T = self.TMP
        for rt in range(3): s.i(f'ds_read_b128 {vr(T+4*rt,4)}, v251 offset:{moff + rt*256}', f'mxr{rt}')
        for rt in range(3):
            s.wait(lg=f'mxr{rt}')
            r = T + 4*rt
            s.i(f'v_max3_f32 v{r}, v{r}, v{r+1}, v{r+2}\nv_max_f32 v{r}, v{r}, v{r+3}\nv_mul_f32 v{dst+rt}, {sC}, v{r}')

    def exp_phase(self, s, pbase, loff):
        s.i(f's_mul_i32 {sT0}, {sW}, 3072\ns_add_u32 {sT0}, {sT0}, {pbase}\nv_add_u32 v15, {sT0}, v1')
        for r in range(4): s.i(f'v_mov_b32 v{self.ONES+r}, 0x3f803f80')
        s.i('.p2align 3')
        groups = [(t, rt) for t in range(4) for rt in range(3)]
        def fm(t, rt): return [f'v_fma_f32 v{r}, v{r}, {sC}, -v{self.MC+rt}' for kt in range(2) for r in range(self.Sreg(t,kt,rt), self.Sreg(t,kt,rt)+4)]
        def ex(t, rt): return [f'v_exp_f32 v{r}, v{r}' for kt in range(2) for r in range(self.Sreg(t,kt,rt), self.Sreg(t,kt,rt)+4)]
        def cv(t, rt):
            a, b = self.Sreg(t,0,rt), self.Sreg(t,1,rt)
            return [f'v_cvt_pk_bf16_f32 v{a}, v{a}, v{a+1}', f'v_cvt_pk_bf16_f32 v{a+1}, v{a+2}, v{a+3}',
                    f'v_cvt_pk_bf16_f32 v{a+2}, v{b}, v{b+1}', f'v_cvt_pk_bf16_f32 v{a+3}, v{b+2}, v{b+3}']
        def out(t, rt):
            a = self.Sreg(t,0,rt)
            return [(f'ds_write_b128 v15, {vr(a,4)} offset:{t*12288 + rt*1024}', 'pw'),
                    mfma(self.LACC+4*rt, self.ONES, a, None if t == 0 else self.LACC+4*rt)]
        for x in fm(*groups[0]): s.i(x)
        for n, g in enumerate(groups):
            if n % 3 == 0: self.stamp(s, f'exp:{n}')
            e = ex(*g)
            nf = fm(*groups[n+1]) if n+1 < len(groups) else []
            pc = cv(*groups[n-1]) if n >= 1 else []
            po = out(*groups[n-2]) if n >= 2 else []
            rest = po + pc + nf
            k = 0
            for q in range(0, 8, 2):
                s.i(e[q]); s.i(e[q+1])
                tgt = (len(rest)*(q+2) + 7)//8
                while k < tgt: s.emit(rest[k]); k += 1
        for x in out(*groups[-2]): s.emit(x)
        for x in cv(*groups[-1]): s.i(x)
        for x in out(*groups[-1]): s.emit(x)
        for rt in range(3): s.i(f'ds_write_b32 v250, v{self.LACC+4*rt} offset:{loff + rt*256}', 'lw')
        self.stamp(s, 'exp:end')

    def prologue(self):
        s = Stream('P')
        s.i('s_cmp_ge_u32 s2, 256\ns_cbranch_scc1 L_end0')
        for n, d in enumerate([4, 8, 12, 16, 20, 24, 32, 28]):
            s.i(f's_load_dwordx2 s[{d}:{d+1}], s[0:1], {8*n}')
        s.i('v_lshrrev_b32 v1, 6, v0\nv_and_b32 v0, 63, v0')
        for d, n in [(4, 384*2048), (8, 8<<20), (12, 8<<20), (16, 8<<20), (20, 8<<20), (24, 384*2048), (28, 256<<20)]:
            s.i(f's_mov_b32 s{d+2}, {n}\ns_mov_b32 s{d+3}, 0x20000')
        s.i('v_readfirstlane_b32 s3, v1')
        s.i(f's_and_b32 {sHKV}, s2, 3\ns_bfe_u32 {sBH}, s2, 0x10002\ns_lshr_b32 {sBL}, s2, 6\ns_bfe_u32 {sJ}, s2, 0x30003')
        s.i(f's_lshl2_add_u32 {sB}, {sBH}, {sBL}\ns_lshl2_add_u32 {sG}, {sB}, {sHKV}\ns_lshl3_add_u32 {sL}, {sG}, {sJ}')
        s.i(f's_and_b32 {sW}, s3, 3\nv_lshlrev_b32 v1, 4, v0')
        self.row_voff(s, 2, 3, 11)
        s.i('s_cmp_ge_u32 s3, 4\ns_cbranch_scc1 L_roleB')
        return s

    def roleA(self, s):
        self.stamp(s, 'entry'); self.stamp(s, 'cyc0')
        R = 4
        self.w_col(s, 7)
        s.i('v_bfe_u32 v8, v0, 3, 2\nv_lshrrev_b32 v9, 5, v0\nv_lshl_or_b32 v8, v9, 3, v8\nv_lshl_or_b32 v3, v8, 13, v7')
        for i, base in [(1, 16), (2, 4), (3, 20)]: s.i(f'v_add_u32 v{3+i}, {base*8192 - i*1024}, v3')
        s.i(f's_lshl_b32 {sRING}, {sW}, 14\ns_add_u32 {sRING}, {sRING}, {L_WQ}')
        s.i(f's_and_b32 {sT0}, {sW}, 1\ns_lshl_b32 s34, {sT0}, 19\ns_lshl3_add_u32 {sT0}, {sHKV}, {sJ}\ns_lshl_b32 {sT0}, {sT0}, 8\ns_add_u32 s34, s34, {sT0}')
        s.i(f's_lshr_b32 {sT0}, {sW}, 1\ns_lshl_b32 {sT0}, {sT0}, 7\ns_add_u32 s34, s34, {sT0}')
        def tab(t):
            self.ord_t(s, f's{TAB+t}', t)
            s.i(f's_lshl_b32 s{TAB+t}, s{TAB+t}, 20\ns_add_u32 s{TAB+t}, s{TAB+t}, s34')
        tab(0); tab(1)
        xl = self.x_loads(s, 0)
        s.i('s_waitcnt lgkmcnt(0)')
        for a, b, c in xl: s.i(a); s.i(b); s.i(c, 'x')
        wq_off = lambda k: f's{TAB+(k>>1)}' if k % 2 == 0 else (f's{TAB+(k>>1)}', 32*8192)
        for k in range(R):
            for it in self.w_dma(WQ, k % R, wq_off(k), f'w{k}'): s.emit(it)
        for t in range(2, 8): tab(t)
        self.tr_addr(s, 12)
        self.sw_base(s, 13, 14)
        s.i(f's_and_b32 {sT0}, {sW}, 1\ns_lshl_b32 {sT0}, {sT0}, 7\nv_xor_b32 v11, {sT0}, v13\nv_xor_b32 v12, 64, v11')
        c = struct.unpack('<I', struct.pack('<f', math.log2(math.e) / math.sqrt(128)))[0]
        s.i(f's_mov_b32 {sC}, {c:#x}')
        s.i(f's_xor_b32 {sT0}, {sL}, 1\ns_lshl_b32 {sT0}, {sT0}, 7\ns_add_u32 s68, s28, {sT0}\ns_addc_u32 s69, s29, 0')
        s.wait(vm='x'); s.i('s_barrier')
        self.stamp(s, 'b0')
        WB = [64, 92]; XB = [80, 108]
        def reads(k):
            t, sub = k >> 1, k & 1
            it = []
            if k == 8: it += ['v_add_u32 v11, 49152, v11', 'v_add_u32 v12, 49152, v12']
            it += [(f'ds_read_b128 {vr(XB[k&1]+4*rt,4)}, v{11+sub} offset:{L_X + (t&3)*12288 + rt*4096}', f'r{k}') for rt in range(3)]
            return it + self.w_reads(WB[k & 1], k % R, f'r{k}')
        s.wait(vm='w0')
        for it in reads(0): s.emit(it)
        for k in range(16):
            s.wait(lg=f'r{k}')
            if k % 4 != 3 or k == 15: self.stamp(s, f'p1:{k}')
            fill = []
            if k + R < 16: fill += self.w_dma(WQ, k % R, wq_off(k+R), f'w{k+R}')
            if k + R == 15: fill += ['s_barrier']
            if k + 1 < 16: fill += [{'vm': f'w{k+1}'}] + reads(k+1)
            s.weave(self.g_mfmas(WB[k&1], XB[k&1], k == 0), fill)
        self.stamp(s, 'T1')
        s.i(f'v_add_u32 v15, {sRING}, v1\ns_xor_b32 {sT0}, {sRING}, 0x4000\nv_add_u32 v14, {sT0}, v1')
        for n in range(6): s.i(f'ds_write_b128 v15, {vr(40+4*n,4)} offset:{n*1024}', 'pw')
        s.i('s_waitcnt lgkmcnt(0)\ns_barrier')
        if self.fast: s.i(f'v_mov_b32 v100, {L_EARLY}\nds_read_b32 v100, v100', 'fl')
        for n in range(6): s.i(f'ds_read_b128 {vr(64+4*n,4)}, v14 offset:{n*1024}', f'pr{n}')
        s.i(f'v_bfe_u32 v15, v0, 5, 1\nv_and_b32 v14, 15, v0\nv_lshlrev_b32 v14, 4, v14\nv_lshl_or_b32 v15, v15, 8, v14\nv_bfe_u32 v14, v0, 4, 1\nv_lshl_or_b32 v15, v14, 3, v15')
        s.i(f's_mul_i32 {sT0}, {sW}, 3072\ns_add_u32 {sT0}, {sT0}, {L_Q}\nv_add_u32 v15, {sT0}, v15\nv_add_u32 v14, {sT0}, v1')
        for n in range(6):
            s.wait(lg=f'pr{n}')
            a, r = 16 + 4*n, 64 + 4*n
            for e in range(4): s.i(f'v_add_f32 v{a+e}, v{a+e}, v{r+e}')
            s.i(f'v_cvt_pk_bf16_f32 v{a}, v{a}, v{a+1}\nv_cvt_pk_bf16_f32 v{a+1}, v{a+2}, v{a+3}')
            s.i(f'ds_write_b64 v15, {vr(a,2)} offset:{(n%3)*1024 + (n//3)*512}', 'qw')
        for rt in range(3): s.i(f'ds_read_b128 {vr(88+4*rt,4)}, v14 offset:{rt*1024}', 'qo')
        s.i(f's_mul_i32 {sT1}, {sL}, 12288\ns_mul_i32 {sT2}, {sW}, 3072\ns_add_u32 {sT1}, {sT1}, {sT2}\ns_add_u32 {sT1}, {sT1}, {WS_Q}')
        if self.fast: s.i(f'v_readfirstlane_b32 {sFAST}, v100')
        s.i('s_waitcnt lgkmcnt(0)')
        self.xstores(s, [f'buffer_store_dwordx4 {vr(88+4*rt,4)}, v1, {WS}, {sT1} offen offset:{rt*1024}' for rt in range(3)], 'qs')
        s.i('s_barrier')
        s.i(f'v_add_u32 v15, {L_Q}, v1')
        for n in range(12): s.i(f'ds_read_b128 {vr(16+4*n,4)}, v15 offset:{n*1024}', 'q')
        s.i(f's_lshl_b32 {sT0}, {sW}, 13\nv_add_u32 v11, {sT0}, v13')
        for u in range(1, 4): s.i(f'v_xor_b32 v{11+u}, {u<<6}, v11')
        s.i(f's_mul_i32 {sRING}, {sW}, 12288')
        if L_V: s.i(f's_add_u32 {sRING}, {sRING}, {L_V}')
        self.tr_addr(s, 252)
        self.w_col(s, 252)
        s.i('v_lshrrev_b32 v253, 3, v0\nv_lshl_or_b32 v3, v253, 8, v252')
        for i in range(1, 4): s.i(f'v_add_u32 v{3+i}, {1024*i}, v3')
        s.i(f's_lshl_b32 s34, {sG}, 18\ns_and_b32 {sT0}, {sJ}, 1\ns_lshl_b32 {sT0}, {sT0}, 17\ns_add_u32 s34, s34, {sT0}')
        s.i(f's_and_b32 {sT0}, {sW}, 1\ns_lshl_b32 {sT0}, {sT0}, 14\ns_add_u32 s34, s34, {sT0}\ns_lshr_b32 {sT0}, {sW}, 1\ns_lshl_b32 {sT0}, {sT0}, 7\ns_add_u32 s34, s34, {sT0}')
        for t in range(4):
            s.i(f's_lshr_b32 {sT0}, {sJ}, 1\ns_add_u32 {sT0}, {sT0}, {t}\ns_and_b32 {sT0}, {sT0}, 3\ns_lshl_b32 {sT0}, {sT0}, 15\ns_add_u32 s{TAB+t}, {sT0}, s34')
        v_off = lambda k: f's{TAB+(k>>1)}' if k % 2 == 0 else (f's{TAB+(k>>1)}', 8192)
        self.misc_addr(s)
        s.wait(vm='qs')
        self.flag(s, 0, 'qf')
        s.i('s_waitcnt lgkmcnt(0)')
        self.stamp(s, 'qflag')
        RV = 3
        for t in range(4):
            s.i('s_barrier')
            if t == 0: self.stamp(s, 'bK0')
            if t == 3: self.stamp(s, 'bK3')
            if t == 2:
                for u in range(4): s.i(f'v_add_u32 v{11+u}, {L_K[2]}, v{11+u}')
            for it in self.k_reads(t): s.emit(it)
            fill = []
            if t == 2: fill += self.w_dma(V, 0, v_off(0), 'v0') + self.w_dma(V, 1, v_off(1), 'v1')
            if t == 3: fill += self.w_dma(V, 2, v_off(2), 'v2')
            if t > 0: fill += self.max_ops(t-1)
            mm = self.qk_mfmas(t); main = []
            for u in range(4): main += [{'lg': f'k{t}_{u}'}] + mm[6*u:6*u+6]
            s.weave(main, fill, start=1)
        s.i(f'v_mov_b32 v252, 0\nds_write_b32 v250, v252 offset:{M_FLG}', 'fz')
        for x in self.max_ops(3): s.i(x)
        self.max_publish(s, M_MAXA)
        s.i('s_waitcnt lgkmcnt(0)\ns_barrier')
        self.stamp(s, 'bmaxA')
        self.max_fetch(s, M_MAXA, self.MC)
        self.exp_phase(s, L_PA, M_LA)
        s.i('s_waitcnt lgkmcnt(0)\ns_barrier')
        self.stamp(s, 'bPA')
        PF = [192, 204]
        s.i(f's_and_b32 {sT0}, {sW}, 1\ns_mul_i32 {sT0}, {sT0}, 6144\ns_add_u32 {sT0}, {sT0}, {L_PA}\nv_add_u32 v15, {sT0}, v1')
        def p_reads(k, tag): return [(f'ds_read_b128 {vr(PF[k&1]+4*rt,4)}, v15 offset:{(k>>1)*12288 + (k&1)*3072 + rt*1024}', tag) for rt in range(3)]
        T = self.TMP
        for rt in range(3): s.i(f'ds_read_b128 {vr(T+4*rt,4)}, v251 offset:{M_LA + rt*256}', 'la')
        for it in p_reads(0, 'a0'): s.emit(it)
        s.wait(vm='v0')
        for it in self.w_reads(64, 0, 'a0'): s.emit(it)
        st = []
        for rt in range(3):
            r = T + 4*rt
            st += [f'v_add_f32 v{r}, v{r}, v{r+1}', f'v_add_f32 v{r+2}, v{r+2}, v{r+3}', f'v_add_f32 v{r}, v{r}, v{r+2}',
                   f'v_rcp_f32 v{232+rt}, v{r}', f'v_log_f32 v{r}, v{r}']
        st += [f'v_add_f32 v{228+rt}, v{T+4*rt}, v{self.MC+rt}' for rt in range(3)]
        for k in range(8):
            s.wait(lg=f'a{k}')
            self.stamp(s, f'pva:{k}')
            if k % 2 == 0: self.stamp(s, f'exp:pv{k}')
            fill = []
            if k + RV < 8: fill += self.w_dma(V, k % RV, v_off(k+RV), f'v{k+RV}')
            if k + 1 < 8: fill += p_reads(k+1, f'a{k+1}') + [{'vm': f'v{k+1}'}] + self.w_reads(64+16*(k+1), (k+1) % RV, f'a{k+1}')
            if k == 7: fill += st
            s.weave(self.g_mfmas(64+16*k, PF[k&1], k == 0, (2, 3, 0, 1) if k == 7 else (0, 1, 2, 3)), fill)
        s.i(f'v_add_u32 v14, {sRING}, v1\ns_xor_b32 {sT0}, {sW}, 1\ns_mul_i32 {sT0}, {sT0}, 12288')
        if L_V: s.i(f's_add_u32 {sT0}, {sT0}, {L_V}')
        s.i(f'v_add_u32 v13, {sT0}, v1')
        for n in range(6): s.i(f'ds_write_b128 v14, {vr(40+4*n,4)} offset:{n*1024}', 'pw')
        s.i(f'v_add_u32 v15, {L_PB - L_PA}, v15' if L_PB > L_PA else f'v_subrev_u32 v15, {L_PA - L_PB}, v15')
        s.i('s_waitcnt lgkmcnt(0)\ns_barrier')
        self.stamp(s, 'bPB')
        RC = 192
        for n in range(6): s.i(f'ds_read_b128 {vr(RC+4*n,4)}, v13 offset:{n*1024}', f'pr{n}')
        for n in range(6):
            s.wait(lg=f'pr{n}')
            for e in range(4): s.i(f'v_add_f32 v{16+4*n+e}, v{16+4*n+e}, v{RC+4*n+e}')
        for it in p_reads(0, 'c0'): s.emit(it)
        for n in range(6):
            a = 16 + 4*n; rt = n % 3; d = 216 + 4*rt + 2*(n//3)
            for e in range(4): s.i(f'v_mul_f32 v{a+e}, v{a+e}, v{232+rt}')
            s.i(f'v_cvt_pk_bf16_f32 v{d}, v{a}, v{a+1}\nv_cvt_pk_bf16_f32 v{d+1}, v{a+2}, v{a+3}')
        s.i(f's_lshl2_add_u32 {sT1}, {sL}, {sW}\ns_lshl_b32 {sT1}, {sT1}, 12\ns_add_u32 {sT1}, {sT1}, {WS_PO}')
        self.xstores(s, [f'buffer_store_dwordx4 {vr(216+4*n,4)}, v1, {WS}, {sT1} offen offset:{n*1024}' for n in range(4)], 'pos')
        FK = self.opt.get('poflag_k', 4)
        st = [(f'ds_read_b128 {vr(T+4*rt,4)}, v251 offset:{M_MAXB + rt*256}', 'sb') for rt in range(3)] + [{'lg': 'sb'}]
        for rt in range(3):
            r = T + 4*rt
            st += [f'v_max3_f32 v{r}, v{r}, v{r+1}, v{r+2}', f'v_max_f32 v{r}, v{r}, v{r+3}', f'v_mul_f32 v{self.MC+rt}, {sC}, v{r}']
        st2 = [(f'ds_read_b128 {vr(T+4*rt,4)}, v251 offset:{M_LB + rt*256}', 'sc') for rt in range(3)] + [{'lg': 'sc'}]
        for rt in range(3):
            r = T + 4*rt
            st2 += [f'v_add_f32 v{r}, v{r}, v{r+1}', f'v_add_f32 v{r+2}, v{r+2}, v{r+3}', f'v_add_f32 v{r}, v{r}, v{r+2}',
                    f'v_rcp_f32 v{232+rt}, v{r}', f'v_log_f32 v{r}, v{r}']
        st2 += [f'v_add_f32 v{self.MC+rt}, v{T+4*rt}, v{self.MC+rt}' for rt in range(3)]
        for k in range(8):
            s.wait(lg=f'c{k}')
            self.stamp(s, f'pvb:{k}')
            fill = []
            if k + 1 < 8: fill += p_reads(k+1, f'c{k+1}')
            if k == 1: fill += st
            if k == 2: fill += st2
            s.weave(self.g_mfmas(64+16*k, PF[k&1], k == 0, (2, 3, 0, 1) if k == 7 else (0, 1, 2, 3)), fill)
            if k == FK:
                s.wait(vm='pos'); self.flag(s, 1, 'pof')
        for n in range(6): s.i(f'ds_write_b128 v14, {vr(40+4*n,4)} offset:{6144 + n*1024}', 'pw')
        s.i(f'v_mov_b32 v252, 1\nds_write_b32 v250, v252 offset:{M_FLG}', 'fw')
        self.stamp(s, 'PVB')
        s.i(f's_lshl_b32 {sT2}, {sW}, 3\ns_lshl_b32 {sT2}, 1, {sT2}')
        self.poll(s, sFLG, 4, 1, sT2, sT2)
        s.i(f's_xor_b32 {sT1}, {sL}, 1\ns_lshl2_add_u32 {sT1}, {sT1}, {sW}\ns_lshl_b32 {sT1}, {sT1}, 12\ns_add_u32 {sT1}, {sT1}, {WS_PO}')
        for n in [3, 0, 1, 2]: s.i(f'buffer_load_dwordx4 {vr(216+4*n,4)}, v1, {WS}, {sT1} offen offset:{n*1024} sc1', f'pol{n}')
        lp = self.lab('pair')
        s.i(f'v_xor_b32 v253, 4, v250\ns_mov_b32 {sCNT}, 0')
        s.i(f'{lp}:')
        s.i(f's_add_u32 {sCNT}, {sCNT}, 1\ns_cmp_gt_u32 {sCNT}, {SPIN_MAX}\ns_cbranch_scc1 L_end')
        s.i(f'ds_read_b32 v252, v253 offset:{M_FLG}', 'fr')
        for n in range(6): s.i(f'ds_read_b128 {vr(RC+4*n,4)}, v13 offset:{6144 + n*1024}', 'pr')
        s.i(f's_waitcnt lgkmcnt(0)\nv_readfirstlane_b32 {sT0}, v252\ns_bitcmp1_b32 {sT0}, 0\ns_cbranch_scc0 {lp}')
        s.i(f'v_mov_b32 v252, 3\nds_write_b32 v250, v252 offset:{M_FLG}', 'fw')
        for n in range(24): s.i(f'v_add_f32 v{16+n}, v{16+n}, v{RC+n}')
        s.wait(vm='pol3')
        self.stamp(s, 'pogot')
        for rt in range(3):
            s.i(f'v_sub_f32 v{240+rt}, v{self.MC+rt}, v{228+rt}')
        for rt in range(3): s.i(f'v_exp_f32 v{240+rt}, v{240+rt}')
        for rt in range(3): s.i(f'v_add_f32 v{240+rt}, 1.0, v{240+rt}')
        for rt in range(3): s.i(f'v_rcp_f32 v{240+rt}, v{240+rt}')
        for rt in range(3): s.i(f'v_sub_f32 v{243+rt}, v{228+rt}, v{self.MC+rt}')
        for rt in range(3): s.i(f'v_exp_f32 v{243+rt}, v{243+rt}')
        for rt in range(3): s.i(f'v_add_f32 v{243+rt}, 1.0, v{243+rt}')
        for rt in range(3): s.i(f'v_rcp_f32 v{243+rt}, v{243+rt}')
        for rt in range(3): s.i(f'v_mul_f32 v{232+rt}, v{232+rt}, v{243+rt}')
        for n in range(24): s.i(f'v_mul_f32 v{16+n}, v{16+n}, v{232+(n//4)%3}')
        for rt in range(3):
            s.wait(vm=f'pol{rt}')
            for tt in range(2):
                a = acc(tt, rt); d = 216 + 4*rt + 2*tt
                for h in range(2):
                    s.i(f'v_lshlrev_b32 v246, 16, v{d+h}\nv_and_b32 v247, 0xffff0000, v{d+h}')
                    s.i(f'v_fmac_f32 v{a+2*h}, v246, v{240+rt}\nv_fmac_f32 v{a+2*h+1}, v247, v{240+rt}')
                    s.i(f'v_cvt_pk_bf16_f32 v{d+h}, v{a+2*h}, v{a+2*h+1}')
        s.i(f's_xor_b32 {sT1}, {sL}, 1\ns_mul_i32 {sT1}, {sT1}, 12288\ns_mul_i32 {sT2}, {sW}, 3072\ns_add_u32 {sT1}, {sT1}, {sT2}\ns_add_u32 {sT1}, {sT1}, {WS_O}')
        self.xstores(s, [f'buffer_store_dwordx4 {vr(216+4*rt,4)}, v1, {WS}, {sT1} offen offset:{rt*1024}' for rt in range(3)], 'os')
        self.stamp(s, 'T2')
        s.i(f's_mul_i32 s34, {sG}, {8*12288}\ns_add_u32 s34, s34, {sT2}\ns_add_u32 s34, s34, {WS_O}\ns_mov_b32 {sRING}, {sT2}')
        for t in range(8):
            self.ord_t(s, f's{TAB+t}', t)
            s.i(f's_mul_i32 s{TAB+t}, s{TAB+t}, 12288\ns_add_u32 s{TAB+t}, s{TAB+t}, s34')
        lp = self.lab('done')
        s.i(f's_mov_b32 {sCNT}, 0')
        s.i(f'{lp}:')
        s.i(f's_add_u32 {sCNT}, {sCNT}, 1\ns_cmp_gt_u32 {sCNT}, {SPIN_MAX}\ns_cbranch_scc1 L_end')
        s.i(f'ds_read_b128 v[240:243], v251 offset:{M_FLG}', 'fr')
        s.i(f's_waitcnt lgkmcnt(0)\nv_and_b32 v240, v240, v241\nv_and_b32 v242, v242, v243\nv_and_b32 v240, v240, v242\nv_readfirstlane_b32 {sT0}, v240\ns_bitcmp1_b32 {sT0}, 1\ns_cbranch_scc0 {lp}')
        s.i(f's_lshl2_add_u32 {sT0}, {sG}, {sW}\ns_lshl_b32 {sT0}, {sT0}, 7\ns_add_u32 {sT0}, {sT0}, {WS_OFL}\ns_add_u32 s34, s28, {sT0}\ns_addc_u32 s35, s29, 0')
        s.wait(vm='os')
        self.flag(s, 'o', 'of')
        self.poll(s, 's[34:35]', 0, 8, 1)
        self.stamp(s, 'oflags')
        def o_dma(t):
            s.i(f's_add_u32 m0, {sRING}, {L_O + t*12288}')
            for rt in range(3): s.i(f'buffer_load_dwordx4 v1, {WS}, s{TAB+t} offen offset:{rt*1024} sc1 lds', f'o{t}')
        for t in range(4): o_dma(t)
        for i in range(4):
            s.wait(vm=f'o{2*i+1}')
            s.i('s_barrier')
            if i < 2: o_dma(2*i+4); o_dma(2*i+5)
        self.stamp(s, 'odone'); self.stamp(s, 'cyc1')
        if self.diag: s.i('s_barrier')
        self.dump_stamps(s)
        s.i('s_endpgm')

    def roleB(self, s):
        s.i('L_roleB:')
        self.stamp(s, 'entry')
        skip = self.lab('nopf')
        s.i(f's_cmp_eq_u32 {sW}, 1\ns_cbranch_scc0 {skip}')
        s.i(f's_getpc_b64 s[60:61]\nL_pcref:\ns_sub_u32 s60, s60, L_pcref-{NAME}\ns_subb_u32 s61, s61, 0\ns_mov_b32 s62, L_codeend-{NAME}\ns_mov_b32 s63, 0x20000')
        s.i(f's_lshr_b32 {sT0}, s2, 3\ns_lshl_b32 {sT0}, {sT0}, 11')
        s.out.append(type(s.out[-1])(f'buffer_load_dwordx4 v[16:19], v1, s[60:63], {sT0} offen'))
        s.out.append(type(s.out[-1])(f'buffer_load_dwordx4 v[16:19], v1, s[60:63], {sT0} offen offset:1024'))
        s.i(f'{skip}:')
        s.i('s_waitcnt lgkmcnt(0)')
        s.i(f's_xor_b32 {sT0}, {sL}, 1\ns_lshl_b32 {sT0}, {sT0}, 7\ns_add_u32 s68, s28, {sT0}\ns_addc_u32 s69, s29, 0')
        skip = self.lab('noclr')
        s.i(f's_cmp_eq_u32 {sW}, 0\ns_cbranch_scc0 {skip}')
        s.i(f's_lshl_b32 {sT0}, {sG}, 9\ns_lshl2_add_u32 {sT0}, {sJ}, {sT0}\ns_add_u32 {sT0}, {sT0}, {WS_OFL}\ns_lshl_b32 {sT1}, {sL}, 7')
        s.i(f'v_lshlrev_b32 v3, 7, v0\nv_lshlrev_b32 v5, 2, v0\nv_mov_b32 v4, 0\ns_mov_b64 exec, 15')
        s.out.append(type(s.out[-1])(f'buffer_store_dword v4, v3, {WS}, {sT0} offen sc1'))
        s.out.append(type(s.out[-1])(f'buffer_store_dword v4, v5, {WS}, {sT1} offen sc1'))
        s.i('s_mov_b64 exec, -1')
        s.i(f's_getreg_b32 {sT0}, hwreg(HW_REG_XCC_ID)\ns_and_b32 {sT0}, {sT0}, 15\ns_or_b32 {sT0}, {sT0}, 0x80')
        s.i(f's_and_b32 {sT1}, {sL}, 3\ns_lshl_b32 {sT1}, {sT1}, 3\ns_lshl_b32 {sFAST}, {sT0}, {sT1}')
        s.i(f's_andn2_b32 {sT1}, {sL}, 3\ns_add_u32 s34, s32, {sT1}\ns_addc_u32 s35, s33, 0')
        s.i(f's_waitcnt vmcnt(0)\ns_atomic_or {sFAST}, s[34:35], 0')
        s.i(f'{skip}:')
        for i in range(1, 8):
            for a, b, c in self.x_loads(s, i): s.i(a); s.i(b); s.i(c, 'x')
        c = struct.unpack('<I', struct.pack('<f', math.log2(math.e) / math.sqrt(128)))[0]
        s.i(f's_mov_b32 {sC}, {c:#x}')
        self.row_voff(s, 2, 3, 8)
        self.sw_base(s, 13, 14)
        s.i(f's_lshl_b32 {sT0}, {sW}, 13\nv_add_u32 v11, {sT0}, v13')
        for u in range(1, 4): s.i(f'v_xor_b32 v{11+u}, {u<<6}, v11')
        s.i(f's_lshl_b32 s34, {sG}, 18\ns_and_b32 {sT0}, {sJ}, 1\ns_lshl_b32 {sT0}, {sT0}, 17\ns_add_u32 s34, s34, {sT0}')
        for t in range(4):
            s.i(f's_lshr_b32 {sT0}, {sJ}, 1\ns_add_u32 {sT0}, {sT0}, {t}\ns_and_b32 {sT0}, {sT0}, 3\ns_lshl_b32 {sT0}, {sT0}, 15\ns_add_u32 s{TAB+t}, {sT0}, s34')
        s.i(f's_lshl_b32 {sRING}, {sW}, 10')
        self.misc_addr(s)
        s.i('s_waitcnt vmcnt(0)\ns_barrier')
        self.stamp(s, 'b0')
        for r in range(4): s.i(f'v_mov_b32 v{16+r}, -1')
        s.i(f's_mul_i32 {sT1}, {sL}, 12288\ns_mul_i32 {sT2}, {sW}, 3072\ns_add_u32 {sT1}, {sT1}, {sT2}\ns_add_u32 {sT1}, {sT1}, {WS_S2}')
        for rt in range(3): s.i(f'buffer_store_dwordx4 v[16:19], v1, {WS}, {sT1} offen offset:{rt*1024} sc1', 'clr')
        s.wait(vm='clr')
        self.flag(s, 2, 'cf', always_slow=True)
        skip = self.lab('nodbg'); lp = self.lab('dbg')
        s.i(f's_cmp_eq_u32 {sW}, 0\ns_cbranch_scc0 {skip}')
        s.i(f's_mov_b32 s60, s32\ns_mov_b32 s61, s33\ns_mov_b32 s62, 256\ns_mov_b32 s63, 0x20000\ns_lshl_b32 {sT1}, {sB}, 5\nv_and_b32 v3, 31, v0\ns_mov_b32 {sCNT}, 0')
        s.i(f'{lp}:')
        s.i(f's_add_u32 {sCNT}, {sCNT}, 1\ns_cmp_gt_u32 {sCNT}, {SPIN_MAX}\ns_cbranch_scc1 L_end')
        s.out.append(type(s.out[-1])(f'buffer_load_ubyte v4, v3, s[60:63], {sT1} offen sc1'))
        s.i(f's_waitcnt vmcnt(0)\nv_cmp_eq_u32 vcc, 0, v4\ns_nop 4\ns_cbranch_vccnz {lp}')
        s.i(f's_getreg_b32 {sT0}, hwreg(HW_REG_XCC_ID)\ns_and_b32 {sT0}, {sT0}, 15\ns_or_b32 {sT0}, {sT0}, 0x80\nv_cmp_eq_u32 vcc, {sT0}, v4')
        s.i(f's_lshl_b32 {sT1}, {sHKV}, 3\ns_nop 3\ns_lshr_b32 {sT0}, vcc_lo, {sT1}\ns_and_b32 {sT0}, {sT0}, 0xff\ns_cmp_eq_u32 {sT0}, 0xff\ns_cselect_b32 {sFAST}, 1, 0')
        s.i(f'{skip}:')
        def k_dma(t):
            for n in range(8):
                s.i(f's_add_u32 m0, {sRING}, {L_K[t] + n*4096}\ns_add_u32 {sT3}, s{TAB+t}, {n*4096}')
                s.i(f'buffer_load_dwordx4 v2, {K}, {sT3} offen lds', f'K{t}')
        s.i('s_barrier')
        self.stamp(s, 'b1')
        k_dma(0)
        if self.fast:
            skip = self.lab('nofl')
            s.i(f's_cmp_eq_u32 {sW}, 0\ns_cbranch_scc0 {skip}')
            s.i(f'v_mov_b32 v3, {L_EARLY}\nv_mov_b32 v4, {sFAST}\nds_write_b32 v3, v4\ns_waitcnt lgkmcnt(0)')
            s.i(f'{skip}:')
        s.i('s_barrier')
        s.i('s_barrier')
        k_dma(1)
        for t in range(4):
            if t == 2:
                s.i(f's_lshl_b32 {sT2}, {sW}, 3\ns_lshl_b32 {sT2}, 1, {sT2}')
                self.poll(s, sFLG, 0, 1, sT2, sT2)
                self.stamp(s, 'qseen')
                s.i(f's_xor_b32 {sT1}, {sL}, 1\ns_mul_i32 {sT1}, {sT1}, 12288\ns_mul_i32 {sT2}, {sW}, 3072\ns_add_u32 {sT1}, {sT1}, {sT2}\ns_add_u32 {sT1}, {sT1}, {WS_Q}')
                s.i(f's_add_u32 m0, {sT2}, {L_Q2}')
                for rt in range(3): s.i(f'buffer_load_dwordx4 v1, {WS}, {sT1} offen offset:{rt*1024} sc1 lds', 'q2')
            s.wait(vm='q2' if t == 3 else f'K{t}')
            s.i('s_waitcnt lgkmcnt(0)\ns_barrier')
            if t < 2: k_dma(t+2)
            if t == 2:
                for u in range(4): s.i(f'v_add_u32 v{11+u}, {L_K[2]}, v{11+u}')
            for it in self.k_reads(t): s.emit(it)
        s.i(f'v_add_u32 v15, {L_Q2}, v1')
        s.wait(lg='k3_1')
        for n in range(12): s.i(f'ds_read_b128 {vr(16+4*n,4)}, v15 offset:{n*1024}', 'q')
        s.i('s_waitcnt lgkmcnt(0)\ns_barrier')
        self.stamp(s, 'bmaxA')
        for t in range(4):
            s.weave(self.qk_mfmas(t), self.max_ops(t-1) if t else [], start=6)
        for x in self.max_ops(3): s.i(x)
        self.max_publish(s, M_MAXB)
        self.stamp(s, 'QKB')
        s.i('s_waitcnt lgkmcnt(0)\ns_barrier')
        self.max_fetch(s, M_MAXB, self.MC)
        self.exp_phase(s, L_PB, M_LB)
        s.i(f's_mul_i32 {sRING}, {sW}, 12288\ns_add_u32 {sRING}, {sRING}, {L_WO}')
        self.tr_addr(s, 252)
        self.w_col(s, 252)
        s.i('v_lshrrev_b32 v253, 3, v0\nv_lshl_or_b32 v3, v253, 11, v252')
        for i in range(1, 4): s.i(f'v_add_u32 v{3+i}, {15360*i}, v3')
        s.i(f's_lshl_b32 s34, {sHKV}, 21\ns_and_b32 {sT0}, {sW}, 1\ns_lshl_b32 {sT0}, {sT0}, 17\ns_add_u32 s34, s34, {sT0}')
        s.i(f's_lshl_b32 {sT0}, {sJ}, 8\ns_add_u32 s34, s34, {sT0}\ns_lshr_b32 {sT0}, {sW}, 1\ns_lshl_b32 {sT0}, {sT0}, 7\ns_add_u32 s34, s34, {sT0}')
        for t in range(8):
            self.ord_t(s, f's{TAB+t}', t)
            s.i(f's_lshl_b32 s{TAB+t}, s{TAB+t}, 18\ns_add_u32 s{TAB+t}, s{TAB+t}, s34')
        wo_off = lambda k: f's{TAB+(k>>1)}' if k % 2 == 0 else (f's{TAB+(k>>1)}', 32*2048)
        self.stamp(s, 'expB')
        s.i('s_waitcnt lgkmcnt(0)\ns_barrier')
        RW, NP = 3, 10
        PK = lambda k: 64 + 16*(k % NP)
        for k in range(RW):
            for it in self.w_dma(WO, k, wo_off(k), f'w{k}'): s.emit(it)
        s.i(f's_lshl2_add_u32 {sT0}, {sB}, {sW}\ns_lshl3_add_u32 {sT0}, {sT0}, {sJ}\ns_lshl_b32 {sT0}, {sT0}, 7\ns_add_u32 s34, s28, {sT0}\ns_addc_u32 s35, s29, 0')
        self.poll(s, 's[34:35]', 8, 1, '0x01010101')
        s.i(f's_and_b32 {sT0}, {sW}, 1\ns_mul_i32 {sT0}, {sT0}, 6144\nv_add_u32 v11, {sT0}, v1')
        if L_O: s.i(f'v_add_u32 v11, {L_O}, v11')
        s.i('v_add_u32 v12, 49152, v11')
        for k in range(NP):
            s.wait(vm=f'w{k}')
            self.stamp(s, f'pvb:w{k}')
            for it in self.w_reads(PK(k), k % RW, f'r{k}'): s.emit(it)
            s.wait(lg=f'r{k}')
            for it in self.w_dma(WO, k % RW, wo_off(k+RW), f'w{k+RW}'): s.emit(it)
        self.stamp(s, 'parked')
        OF = [224, 236]
        def o_reads(k): return [(f'ds_read_b128 {vr(OF[k&1]+4*rt,4)}, v{11+(k>>3)} offset:{((k>>1)&3)*12288 + (k&1)*3072 + rt*1024}', f'o{k}') for rt in range(3)]
        s.i('s_barrier')
        self.stamp(s, 'bO0')
        for it in o_reads(0): s.emit(it)
        late = {1: 10, 2: 11, 3: 12, 7: 13, 8: 14, 9: 15}
        for k in range(16):
            s.wait(lg=f'o{k}')
            if k % 2 == 0: self.stamp(s, f'p3:{k}')
            if k >= NP: s.wait(lg=f'r{k}')
            fill = []
            if k - 1 in late and late[k-1] + RW < 16:
                kk = late[k-1]
                fill += [{'lg': f'r{kk}'}] + self.w_dma(WO, kk % RW, wo_off(kk+RW), f'w{kk+RW}')
            if k + 1 < 16:
                if (k+1) % 4 == 0: fill += ['s_barrier']
                fill += o_reads(k+1)
            if k in late:
                kk = late[k]
                fill += [{'vm': f'w{kk}'}] + self.w_reads(PK(kk), kk % RW, f'r{kk}')
            s.weave(self.g_mfmas(PK(k), OF[k&1], k == 0, (2, 3, 0, 1) if k == 15 else (0, 1, 2, 3)), fill)
        self.stamp(s, 'P3')
        s.i(f'v_add_u32 v14, {sRING}, v1\ns_xor_b32 {sT0}, {sW}, 1\ns_mul_i32 {sT0}, {sT0}, 12288\ns_add_u32 {sT0}, {sT0}, {L_WO}\nv_add_u32 v13, {sT0}, v1')
        for n in range(6): s.i(f'ds_write_b128 v14, {vr(40+4*n,4)} offset:{n*1024}', 'pw')
        s.i('s_waitcnt lgkmcnt(0)\ns_barrier')
        for n in range(6): s.i(f'ds_read_b128 {vr(64+4*n,4)}, v13 offset:{n*1024}', f'pr{n}')
        for n in range(6):
            s.wait(lg=f'pr{n}')
            for e in range(4): s.i(f'v_add_f32 v{16+4*n+e}, v{16+4*n+e}, v{64+4*n+e}')
        s.i(f's_cmp_eq_u32 {sW}, {sHKV}\ns_cbranch_scc1 L_recv')
        r = s.fork('B')
        for n in range(6):
            a = 16 + 4*n; d = 64 + 4*(n % 3) + 2*(n//3)
            s.i(f'v_cvt_pk_bf16_f32 v{d}, v{a}, v{a+1}\nv_cvt_pk_bf16_f32 v{d+1}, v{a+2}, v{a+3}')
        for n in range(12): s.i(f'v_min_u32 v{64+n}, -2, v{64+n}')
        s.i(f's_lshl2_add_u32 {sT1}, {sB}, {sW}\ns_lshl3_add_u32 {sT1}, {sT1}, {sJ}\ns_mul_i32 {sT1}, {sT1}, 12288\ns_mul_i32 {sT2}, {sHKV}, 3072\ns_add_u32 {sT1}, {sT1}, {sT2}\ns_add_u32 {sT1}, {sT1}, {WS_S2}')
        for rt in range(3): s.i(f'buffer_store_dwordx4 {vr(64+4*rt,4)}, v1, {WS}, {sT1} offen offset:{rt*1024} sc1', 's2')
        saved = list(self.stamps['B'])
        self.stamp(s, 'sent'); self.stamp(s, 'got'); self.stamp(s, 'end')
        self.dump_stamps(s)
        s.i('s_endpgm')
        self.stamps['B'] = saved
        r.i('L_recv:')
        self.stamp(r, 'sent')
        r.i(f's_mul_i32 {sT1}, {sL}, 12288\ns_add_u32 {sT1}, {sT1}, {WS_S2}')
        for n in range(1, 4):
            r.i(f's_add_u32 {sT0}, {sHKV}, {n}\ns_and_b32 {sT0}, {sT0}, 3\ns_mul_i32 {sT0}, {sT0}, 3072\ns_add_u32 s{TAB+n}, {sT0}, {sT1}')
        r.i('v_and_b32 v2, 15, v0\nv_lshlrev_b32 v2, 11, v2\nv_bfe_u32 v3, v0, 4, 1\nv_lshl_or_b32 v2, v3, 5, v2\nv_lshrrev_b32 v3, 5, v0\nv_lshl_or_b32 v2, v3, 4, v2')
        r.i(f's_mul_i32 s{TAB+4}, {sB}, {48*2048}\ns_lshl_b32 {sT0}, {sJ}, 8\ns_add_u32 s{TAB+4}, s{TAB+4}, {sT0}\ns_lshl_b32 {sT0}, {sHKV}, 6\ns_add_u32 s{TAB+4}, s{TAB+4}, {sT0}')
        r.i(f's_add_u32 s{TAB+5}, s{TAB+4}, {16*2048}\ns_add_u32 s{TAB+6}, s{TAB+4}, {32*2048}')
        lp = self.lab('s2')
        r.i(f's_mov_b32 {sCNT}, 0')
        r.i(f'{lp}:')
        r.i(f's_add_u32 {sCNT}, {sCNT}, 1\ns_cmp_gt_u32 {sCNT}, {SPIN_MAX}\ns_cbranch_scc1 L_end')
        for n in range(3):
            for rt in range(3): r.i(f'buffer_load_dwordx4 {vr(64+12*n+4*rt,4)}, v1, {WS}, s{TAB+1+n} offen offset:{rt*1024} sc1', 'in')
        r.i('s_waitcnt vmcnt(0)')
        r.i('v_max3_u32 v4, v64, v65, v66\nv_max3_u32 v5, v67, v68, v69')
        for n in range(70, 100, 4):
            r.i(f'v_max3_u32 v4, v4, v{n}, v{n+1}')
            if n + 3 < 100: r.i(f'v_max3_u32 v5, v5, v{n+2}, v{n+3}')
        r.i(f'v_max_u32 v4, v4, v5\nv_cmp_eq_u32 vcc, -1, v4\ns_nop 4\ns_cbranch_vccnz {lp}')
        self.stamp(r, 'got')
        for rt in range(3):
            for n in range(3):
                for tt in range(2):
                    a = acc(tt, rt); d = 64 + 12*n + 4*rt + 2*tt
                    for h in range(2):
                        r.i(f'v_lshlrev_b32 v4, 16, v{d+h}\nv_and_b32 v5, 0xffff0000, v{d+h}')
                        r.i(f'v_add_f32 v{a+2*h}, v{a+2*h}, v4\nv_add_f32 v{a+2*h+1}, v{a+2*h+1}, v5')
            o = 100 + 4*rt
            for tt in range(2):
                a = acc(tt, rt)
                r.i(f'v_cvt_pk_bf16_f32 v{o+2*tt}, v{a}, v{a+1}\nv_cvt_pk_bf16_f32 v{o+2*tt+1}, v{a+2}, v{a+3}')
            r.i(f'v_permlane16_swap_b32 v{o}, v{o+2}\nv_permlane16_swap_b32 v{o+1}, v{o+3}')
            r.i(f'buffer_store_dwordx4 {vr(o,4)}, v2, {OUT}, s{TAB+4+rt} offen', 'out')
        if self.diag: r.i('s_waitcnt vmcnt(0)')
        self.stamp(r, 'end')
        self.dump_stamps(r)
        r.i('L_end:\ns_endpgm')
        return r

    def build(self):
        p = self.prologue()
        a = p.fork('A'); b = p.fork('B')
        self.roleA(a)
        r = self.roleB(b)
        o = [HDR, '; @launch grid=(256,1,1) block=(512,1,1) lds=163840',
             '.amdgcn_target "amdgcn-amd-amdhsa--gfx950"', '.text', f'.globl {NAME}', '.p2align 8', f'.type {NAME},@function', f'{NAME}:',
             p.text(), a.text(), 'L_end0:\n    s_endpgm', b.text(), r.text(), 'L_codeend:',
             f'''.section .rodata,"a"
.p2align 6
.amdhsa_kernel {NAME}
  .amdhsa_next_free_vgpr 256
  .amdhsa_next_free_sgpr 102
  .amdhsa_accum_offset 256
  .amdhsa_group_segment_fixed_size 0
  .amdhsa_kernarg_size 64
  .amdhsa_user_sgpr_count 2
  .amdhsa_user_sgpr_kernarg_segment_ptr 1
  .amdhsa_system_sgpr_workgroup_id_x 1
.end_amdhsa_kernel''']
        self.nops = (a.nops, b.nops, r.nops)
        return '\n'.join(o) + '\n'

if __name__ == '__main__':
    g = Gen(diag='diag' in sys.argv, fast='slow' not in sys.argv)
    t = g.build()
    out = [a for a in sys.argv[1:] if a.endswith('.s')]
    open(out[0] if out else 'k.s', 'w').write(t)
    print('nops', g.nops, 'lines', t.count('\n'), g.stamps)
```

```python
import math, struct, sys
from asmlib import Stream

NAME = 'standalone__gqa_block_cached__near_ridge_kernel'
HDR = open('standalone__gqa_block_cached__near_ridge.s.ref').read().split('; Override launch')[0].rstrip()

WS_FLAGS, WS_OFL, WS_Q, WS_PO, WS_O, WS_S2, WS_STAMP = 0, 0x8000, 0x10000, 0x400000, 0x800000, 0xC00000, 0x1000000
L_X = 0; L_WQ = 98304
L_K = [0, 32768, 98304, 131072]
L_EARLY = 65536; L_Q = 69632; L_Q2 = 81920
L_V = 0; L_MISC = 49152
L_PB = 65536; L_PA = 114688
L_WO = 114688; L_O = 0
M_MAXA, M_MAXB, M_LA, M_LB, M_FLG = 0, 768, 1536, 2304, 3072
L_DONE = 98304
X, K, V, WQ, WO, OUT, WS = 's[4:7]', 's[8:11]', 's[12:15]', 's[16:19]', 's[20:23]', 's[24:27]', 's[28:31]'
sW, sHKV, sBH, sBL, sJ, sB, sG, sL = 's36', 's37', 's38', 's39', 's40', 's41', 's42', 's43'
sRING, sC, sCNT, sFAST = 's44', 's45', 's46', 's47'
TAB = 48
sT0, sT1, sT2, sT3 = 's56', 's57', 's58', 's59'
POLL = 60
sFLG = 's[68:69]'
STAMP0 = 70
SPIN_MAX = 1 << 20

def vr(a, n): return f'v[{a}:{a+n-1}]'
def mfma(d, a, b, c=None):
    return f'v_mfma_f32_16x16x32_bf16 {vr(d,4)}, {vr(a,4)}, {vr(b,4)}, {vr(c,4) if c is not None else 0}'
ACC = 16
def acc(t, rt): return ACC + (t*3 + rt)*4

class Gen:
    def __init__(self, diag=False, fast=True, **opt):
        self.diag = diag; self.fast = fast; self.opt = opt
        self.nlab = 0
        self.stamps = {'A': [], 'B': []}

    def lab(self, p):
        self.nlab += 1
        return f'L_{p}_{self.nlab}'

    def stamp(self, s, name):
        amp = self.opt.get('amp')
        if amp and s.name == 'B':
            if name == amp: s.i('s_memrealtime s[72:73]')
        if not self.diag: return
        foc = self.opt.get('focus')
        if ':' in name:
            if name.split(':')[0] != foc: return
        elif foc and name not in ('entry', 'sent', 'got', 'end') and name not in self.opt.get('keep', '').split(','): return
        l = self.stamps[s.name]; n = len(l); l.append(name)
        assert n < 16
        s.i(f'{"s_memtime" if (name.startswith("cyc") or self.opt.get("cyc")) else "s_memrealtime"} s[{STAMP0+2*n}:{STAMP0+2*n+1}]')

    def dump_stamps(self, s):
        if not self.diag: return
        n = len(self.stamps[s.name])
        s.i('s_waitcnt vmcnt(0) lgkmcnt(0)')
        s.i(f's_lshl_b32 {sT0}, s2, 3\ns_add_u32 {sT0}, {sT0}, {sW}')
        if s.name == 'B': s.i(f's_add_u32 {sT0}, {sT0}, 4')
        s.i(f's_lshl_b32 {sT0}, {sT0}, 7\ns_add_u32 {sT0}, {sT0}, {WS_STAMP}\nv_mov_b32 v1, 0')
        for k in range(n):
            s.i(f'v_mov_b32 v2, s{STAMP0+2*k}\nbuffer_store_dword v2, v1, {WS}, {sT0} offen offset:{4*k}\ns_waitcnt vmcnt(0)')

    def poll(self, s, base, off, n, want, mask=None):
        lp = self.lab('poll')
        s.i('s_waitcnt lgkmcnt(0)')
        s.i(f's_mov_b32 {sCNT}, 0')
        s.i(f'{lp}:')
        s.i(f's_add_u32 {sCNT}, {sCNT}, 1\ns_cmp_gt_u32 {sCNT}, {SPIN_MAX}\ns_cbranch_scc1 L_end')
        if n == 1: s.i(f's_load_dword s{POLL}, {base}, {off} glc')
        else: s.i(f's_load_dwordx{n} s[{POLL}:{POLL+n-1}], {base}, {off} glc')
        s.i('s_waitcnt lgkmcnt(0)')
        if n == 8:
            s.i(f's_and_b64 s[{POLL}:{POLL+1}], s[{POLL}:{POLL+1}], s[{POLL+2}:{POLL+3}]')
            s.i(f's_and_b64 s[{POLL+4}:{POLL+5}], s[{POLL+4}:{POLL+5}], s[{POLL+6}:{POLL+7}]')
            s.i(f's_and_b64 s[{POLL}:{POLL+1}], s[{POLL}:{POLL+1}], s[{POLL+4}:{POLL+5}]')
            s.i(f's_and_b32 s{POLL}, s{POLL}, s{POLL+1}')
        if mask is not None: s.i(f's_and_b32 s{POLL}, s{POLL}, {mask}')
        s.i(f's_cmp_eq_u32 s{POLL}, {want}\ns_cbranch_scc0 {lp}')

    def xstores(self, s, items, tag):
        if not self.fast:
            for t in items: s.i(t + ' sc1', tag)
            return
        a, b = self.lab('slow'), self.lab('join')
        s.i(f's_cmp_eq_u32 {sFAST}, 0\ns_cbranch_scc1 {a}')
        for t in items: s.out.append(type(s.out[-1])(t))
        s.i(f's_branch {b}\n{a}:')
        for t in items: s.i(t + ' sc1', tag)
        s.i(f'{b}:')

    def flag(self, s, kind, tag, always_slow=False):
        s.i(f'v_mov_b32 v254, 0\nv_mov_b32 v255, 1')
        if kind == 'o':
            s.i(f's_lshl2_add_u32 {sT0}, {sG}, {sW}\ns_lshl_b32 {sT0}, {sT0}, 7\ns_lshl2_add_u32 {sT0}, {sJ}, {sT0}\ns_add_u32 {sT0}, {sT0}, {WS_OFL}')
            off = 0
        else:
            s.i(f's_lshl_b32 {sT0}, {sL}, 7\ns_add_u32 {sT0}, {sT0}, {sW}')
            off = kind*4
        s.i('s_mov_b64 exec, 1')
        st = f'buffer_store_byte v255, v254, {WS}, {sT0} offen offset:{off}'
        if always_slow or self.opt.get('slowflag', 0): s.i(st + ' sc1', tag)
        else: self.xstores(s, [st], tag)
        s.i('s_mov_b64 exec, -1')

    def w_dma(self, srd, slot, soff, tag):
        it = [f's_add_u32 m0, {sRING}, {slot*4096}']
        if isinstance(soff, tuple):
            it.append(f's_add_u32 {sT3}, {soff[0]}, {soff[1]}'); soff = sT3
        for i in range(4):
            it.append((f'buffer_load_dwordx4 v{3+i}, {srd}, {soff} offen offset:{i*1024} lds', tag))
        return it

    def w_reads(self, dst, slot, tag):
        it = []
        for t in range(4):
            it.append((f'ds_read_b64_tr_b16 {vr(dst+4*t,2)}, v{7+t} offset:{slot*4096}', tag))
            it.append((f'ds_read_b64_tr_b16 {vr(dst+4*t+2,2)}, v{7+t} offset:{slot*4096+2048}', tag))
        return it

    def g_mfmas(self, wreg, breg, first, order=(0, 1, 2, 3)):
        return [mfma(acc(t, rt), wreg+4*t, breg+4*rt, None if first else acc(t, rt)) for t in order for rt in range(3)]

    def tr_addr(self, s, tmp):
        s.i(f'v_lshrrev_b32 v{tmp}, 2, v0')
        s.i(f'v_bfe_u32 v{tmp+1}, v0, 3, 2')
        s.i(f's_and_b32 {sT0}, {sW}, 1\ns_lshl_b32 {sT0}, {sT0}, 1')
        s.i(f'v_xor_b32 v{tmp+1}, {sT0}, v{tmp+1}')
        s.i(f'v_lshlrev_b32 v{tmp+1}, 5, v{tmp+1}')
        s.i(f'v_lshl_or_b32 v{tmp}, v{tmp}, 7, v{tmp+1}')
        s.i(f'v_and_b32 v{tmp+1}, 3, v0\nv_lshl_or_b32 v{tmp}, v{tmp+1}, 3, v{tmp}')
        for t in range(4):
            s.i(f'v_xor_b32 v{tmp+1}, {t<<5}, v{tmp}\nv_add_u32 v{7+t}, {sRING}, v{tmp+1}')

    def w_col(self, s, dst):
        s.i(f'v_lshrrev_b32 v{dst}, 3, v0\nv_and_b32 v{dst}, 6, v{dst}\nv_xor_b32 v{dst}, v{dst}, v0\nv_and_b32 v{dst}, 7, v{dst}\nv_lshlrev_b32 v{dst}, 4, v{dst}')

    def row_voff(self, s, dst, tmp, shift):
        s.i(f'v_lshrrev_b32 v{tmp}, 4, v0\ns_lshl_b32 {sT0}, {sW}, 2\nv_add_u32 v{tmp}, {sT0}, v{tmp}')
        s.i(f'v_xor_b32 v{dst}, v{tmp}, v0\nv_and_b32 v{dst}, 15, v{dst}\nv_lshlrev_b32 v{dst}, 4, v{dst}')
        s.i(f'v_lshl_or_b32 v{dst}, v{tmp}, {shift}, v{dst}')

    def sw_base(self, s, dst, tmp):
        s.i(f'v_lshrrev_b32 v{tmp}, 4, v0\nv_xor_b32 v{tmp}, v{tmp}, v0\nv_and_b32 v{tmp}, 15, v{tmp}\nv_lshlrev_b32 v{tmp}, 4, v{tmp}')
        s.i(f'v_and_b32 v{dst}, 15, v0\nv_lshl_or_b32 v{dst}, v{dst}, 8, v{tmp}')

    def ord_t(self, s, dst, t):
        s.i(f's_add_u32 {dst}, {sBL}, {t & 3}\ns_and_b32 {dst}, {dst}, 3')
        if t >> 2: s.i(f's_xor_b32 {sT1}, {sBH}, 1\ns_lshl2_add_u32 {dst}, {sT1}, {dst}')
        else: s.i(f's_lshl2_add_u32 {dst}, {sBH}, {dst}')

    def x_loads(self, s, i):
        s.i(f's_add_u32 {sT0}, {sJ}, {i}\ns_and_b32 {sT0}, {sT0}, 7')
        s.i(f's_lshr_b32 {sT1}, {sT0}, 2\ns_xor_b32 {sT1}, {sT1}, {sBH}\ns_sub_u32 {sT2}, {sT0}, {sBL}\ns_and_b32 {sT2}, {sT2}, 3\ns_lshl2_add_u32 {sT1}, {sT1}, {sT2}')
        s.i(f's_mul_i32 {sT1}, {sT1}, 12288\ns_lshl_b32 {sT2}, {sW}, 10\ns_add_u32 {sT1}, {sT1}, {sT2}')
        s.i(f's_lshl_b32 {sT0}, {sT0}, 8\ns_mul_i32 {sT2}, {sB}, {48*2048}\ns_add_u32 {sT0}, {sT0}, {sT2}')
        return [(f's_add_u32 m0, {sT1}, {L_X + rt*4096}', f's_add_u32 {sT2}, {sT0}, {rt*16*2048}',
                 f'buffer_load_dwordx4 v2, {X}, {sT2} offen lds') for rt in range(3)]

    def Kreg(self, t, kt, u): return 64 + 32*t + (kt*4 + u)*4
    def Sreg(self, t, kt, rt): return (192 if t == 0 else 64 + 32*(t-1)) + (kt*3 + rt)*4
    def Qreg(self, u, rt): return 16 + (u*3 + rt)*4
    MX, MC, LACC, ONES, TMP = 232, 235, 216, 228, 238

    def k_reads(self, t):
        return [(f'ds_read_b128 {vr(self.Kreg(t,kt,u),4)}, v{11+u} offset:{L_K[t] - L_K[t & 2] + kt*4096}', f'k{t}_{u}')
                for u in range(4) for kt in range(2)]

    def qk_mfmas(self, t):
        return [mfma(self.Sreg(t,kt,rt), self.Kreg(t,kt,u), self.Qreg(u,rt), None if u == 0 else self.Sreg(t,kt,rt))
                for u in range(4) for kt in range(2) for rt in range(3)]

    def max_ops(self, t):
        it = []
        for kt in range(2):
            for rt in range(3):
                r = self.Sreg(t, kt, rt); m = self.MX + rt
                if t == 0 and kt == 0:
                    it.append(f'v_max3_f32 v{m}, v{r}, v{r+1}, v{r+2}'); it.append(f'v_max_f32 v{m}, v{m}, v{r+3}')
                else:
                    it.append(f'v_max3_f32 v{m}, v{m}, v{r}, v{r+1}'); it.append(f'v_max3_f32 v{m}, v{m}, v{r+2}, v{r+3}')
        return it

    def max_publish(self, s, moff):
        T = self.TMP
        for sw in ('v_permlane32_swap_b32', 'v_permlane16_swap_b32'):
            for rt in range(3): s.i(f'v_mov_b32 v{T+rt}, v{self.MX+rt}')
            for rt in range(3): s.i(f'{sw} v{self.MX+rt}, v{T+rt}')
            for rt in range(3): s.i(f'v_max_f32 v{self.MX+rt}, v{self.MX+rt}, v{T+rt}')
        for rt in range(3): s.i(f'ds_write_b32 v250, v{self.MX+rt} offset:{moff + rt*256}', 'mxw')

    def misc_addr(self, s):
        s.i(f'v_and_b32 v251, 15, v0\nv_lshlrev_b32 v251, 4, v251\nv_add_u32 v251, {L_MISC}, v251')
        s.i(f's_lshl_b32 {sT0}, {sW}, 2\nv_add_u32 v250, {sT0}, v251')

    def max_fetch(self, s, moff, dst):
        T = self.TMP
        for rt in range(3): s.i(f'ds_read_b128 {vr(T+4*rt,4)}, v251 offset:{moff + rt*256}', f'mxr{rt}')
        for rt in range(3):
            s.wait(lg=f'mxr{rt}')
            r = T + 4*rt
            s.i(f'v_max3_f32 v{r}, v{r}, v{r+1}, v{r+2}\nv_max_f32 v{r}, v{r}, v{r+3}\nv_mul_f32 v{dst+rt}, {sC}, v{r}')

    def exp_phase(self, s, pbase, loff):
        s.i(f's_mul_i32 {sT0}, {sW}, 3072\ns_add_u32 {sT0}, {sT0}, {pbase}\nv_add_u32 v15, {sT0}, v1')
        for r in range(4): s.i(f'v_mov_b32 v{self.ONES+r}, 0x3f803f80')
        s.i('.p2align 3')
        groups = [(t, rt) for t in range(4) for rt in range(3)]
        def fm(t, rt): return [f'v_fma_f32 v{r}, v{r}, {sC}, -v{self.MC+rt}' for kt in range(2) for r in range(self.Sreg(t,kt,rt), self.Sreg(t,kt,rt)+4)]
        def ex(t, rt): return [f'v_exp_f32 v{r}, v{r}' for kt in range(2) for r in range(self.Sreg(t,kt,rt), self.Sreg(t,kt,rt)+4)]
        def cv(t, rt):
            a, b = self.Sreg(t,0,rt), self.Sreg(t,1,rt)
            return [f'v_cvt_pk_bf16_f32 v{a}, v{a}, v{a+1}', f'v_cvt_pk_bf16_f32 v{a+1}, v{a+2}, v{a+3}',
                    f'v_cvt_pk_bf16_f32 v{a+2}, v{b}, v{b+1}', f'v_cvt_pk_bf16_f32 v{a+3}, v{b+2}, v{b+3}']
        def out(t, rt):
            a = self.Sreg(t,0,rt)
            return [(f'ds_write_b128 v15, {vr(a,4)} offset:{t*12288 + rt*1024}', 'pw'),
                    mfma(self.LACC+4*rt, self.ONES, a, None if t == 0 else self.LACC+4*rt)]
        for x in fm(*groups[0]): s.i(x)
        for n, g in enumerate(groups):
            if n % 3 == 0: self.stamp(s, f'exp:{n}')
            e = ex(*g)
            nf = fm(*groups[n+1]) if n+1 < len(groups) else []
            pc = cv(*groups[n-1]) if n >= 1 else []
            po = out(*groups[n-2]) if n >= 2 else []
            rest = po + pc + nf
            k = 0
            for q in range(0, 8, 2):
                s.i(e[q]); s.i(e[q+1])
                tgt = (len(rest)*(q+2) + 7)//8
                while k < tgt: s.emit(rest[k]); k += 1
        for x in out(*groups[-2]): s.emit(x)
        for x in cv(*groups[-1]): s.i(x)
        for x in out(*groups[-1]): s.emit(x)
        for rt in range(3): s.i(f'ds_write_b32 v250, v{self.LACC+4*rt} offset:{loff + rt*256}', 'lw')
        self.stamp(s, 'exp:end')

    def prologue(self):
        s = Stream('P')
        if self.opt.get('amp'): s.i('s_memrealtime s[70:71]')
        s.i('s_cmp_ge_u32 s2, 256\ns_cbranch_scc1 L_end0')
        for n, d in enumerate([4, 8, 12, 16, 20, 24, 32, 28]):
            s.i(f's_load_dwordx2 s[{d}:{d+1}], s[0:1], {8*n}')
        s.i('v_lshrrev_b32 v1, 6, v0\nv_and_b32 v0, 63, v0')
        for d, n in [(4, 384*2048), (8, 8<<20), (12, 8<<20), (16, 8<<20), (20, 8<<20), (24, 384*2048), (28, 256<<20)]:
            s.i(f's_mov_b32 s{d+2}, {n}\ns_mov_b32 s{d+3}, 0x20000')
        s.i('v_readfirstlane_b32 s3, v1')
        s.i(f's_and_b32 {sHKV}, s2, 3\ns_bfe_u32 {sBH}, s2, 0x10002\ns_lshr_b32 {sBL}, s2, 6\ns_bfe_u32 {sJ}, s2, 0x30003')
        s.i(f's_lshl2_add_u32 {sB}, {sBH}, {sBL}\ns_lshl2_add_u32 {sG}, {sB}, {sHKV}\ns_lshl3_add_u32 {sL}, {sG}, {sJ}')
        s.i(f's_and_b32 {sW}, s3, 3\nv_lshlrev_b32 v1, 4, v0')
        self.row_voff(s, 2, 3, 11)
        s.i('s_cmp_ge_u32 s3, 4\ns_cbranch_scc1 L_roleB')
        return s

    def roleA(self, s):
        self.stamp(s, 'entry'); self.stamp(s, 'cyc0')
        R = 4
        self.w_col(s, 7)
        s.i('v_bfe_u32 v8, v0, 3, 2\nv_lshrrev_b32 v9, 5, v0\nv_lshl_or_b32 v8, v9, 3, v8\nv_lshl_or_b32 v3, v8, 13, v7')
        for i, base in [(1, 16), (2, 4), (3, 20)]: s.i(f'v_add_u32 v{3+i}, {base*8192 - i*1024}, v3')
        s.i(f's_lshl_b32 {sRING}, {sW}, 14\ns_add_u32 {sRING}, {sRING}, {L_WQ}')
        s.i(f's_and_b32 {sT0}, {sW}, 1\ns_lshl_b32 s34, {sT0}, 19\ns_lshl3_add_u32 {sT0}, {sHKV}, {sJ}\ns_lshl_b32 {sT0}, {sT0}, 8\ns_add_u32 s34, s34, {sT0}')
        s.i(f's_lshr_b32 {sT0}, {sW}, 1\ns_lshl_b32 {sT0}, {sT0}, 7\ns_add_u32 s34, s34, {sT0}')
        def tab(t):
            self.ord_t(s, f's{TAB+t}', t)
            s.i(f's_lshl_b32 s{TAB+t}, s{TAB+t}, 20\ns_add_u32 s{TAB+t}, s{TAB+t}, s34')
        tab(0); tab(1)
        xl = self.x_loads(s, 0)
        s.i('s_waitcnt lgkmcnt(0)')
        for a, b, c in xl: s.i(a); s.i(b); s.i(c, 'x')
        wq_off = lambda k: f's{TAB+(k>>1)}' if k % 2 == 0 else (f's{TAB+(k>>1)}', 32*8192)
        for k in range(R):
            for it in self.w_dma(WQ, k % R, wq_off(k), f'w{k}'): s.emit(it)
        for t in range(2, 8): tab(t)
        self.tr_addr(s, 12)
        self.sw_base(s, 13, 14)
        s.i(f's_and_b32 {sT0}, {sW}, 1\ns_lshl_b32 {sT0}, {sT0}, 7\nv_xor_b32 v11, {sT0}, v13\nv_xor_b32 v12, 64, v11')
        c = struct.unpack('<I', struct.pack('<f', math.log2(math.e) / math.sqrt(128)))[0]
        s.i(f's_mov_b32 {sC}, {c:#x}')
        s.i(f's_xor_b32 {sT0}, {sL}, 1\ns_lshl_b32 {sT0}, {sT0}, 7\ns_add_u32 s68, s28, {sT0}\ns_addc_u32 s69, s29, 0')
        s.wait(vm='x'); s.i('s_barrier')
        self.stamp(s, 'b0')
        WB = [64, 92]; XB = [80, 108]
        def reads(k):
            t, sub = k >> 1, k & 1
            it = []
            if k == 8: it += ['v_add_u32 v11, 49152, v11', 'v_add_u32 v12, 49152, v12']
            it += [(f'ds_read_b128 {vr(XB[k&1]+4*rt,4)}, v{11+sub} offset:{L_X + (t&3)*12288 + rt*4096}', f'r{k}') for rt in range(3)]
            return it + self.w_reads(WB[k & 1], k % R, f'r{k}')
        s.wait(vm='w0')
        for it in reads(0): s.emit(it)
        for k in range(16):
            s.wait(lg=f'r{k}')
            if k % 4 != 3 or k == 15: self.stamp(s, f'p1:{k}')
            fill = []
            if k + R < 16: fill += self.w_dma(WQ, k % R, wq_off(k+R), f'w{k+R}')
            if k + R == 15: fill += ['s_barrier']
            if k + 1 < 16: fill += [{'vm': f'w{k+1}'}] + reads(k+1)
            s.weave(self.g_mfmas(WB[k&1], XB[k&1], k == 0), fill)
        self.stamp(s, 'T1')
        s.i(f'v_add_u32 v15, {sRING}, v1\ns_xor_b32 {sT0}, {sRING}, 0x4000\nv_add_u32 v14, {sT0}, v1')
        for n in range(6): s.i(f'ds_write_b128 v15, {vr(40+4*n,4)} offset:{n*1024}', 'pw')
        s.i('s_waitcnt lgkmcnt(0)\ns_barrier')
        if self.fast: s.i(f'v_mov_b32 v100, {L_EARLY}\nds_read_b32 v100, v100', 'fl')
        for n in range(6): s.i(f'ds_read_b128 {vr(64+4*n,4)}, v14 offset:{n*1024}', f'pr{n}')
        s.i(f'v_bfe_u32 v15, v0, 5, 1\nv_and_b32 v14, 15, v0\nv_lshlrev_b32 v14, 4, v14\nv_lshl_or_b32 v15, v15, 8, v14\nv_bfe_u32 v14, v0, 4, 1\nv_lshl_or_b32 v15, v14, 3, v15')
        s.i(f's_mul_i32 {sT0}, {sW}, 3072\ns_add_u32 {sT0}, {sT0}, {L_Q}\nv_add_u32 v15, {sT0}, v15\nv_add_u32 v14, {sT0}, v1')
        for n in range(6):
            s.wait(lg=f'pr{n}')
            a, r = 16 + 4*n, 64 + 4*n
            for e in range(4): s.i(f'v_add_f32 v{a+e}, v{a+e}, v{r+e}')
            s.i(f'v_cvt_pk_bf16_f32 v{a}, v{a}, v{a+1}\nv_cvt_pk_bf16_f32 v{a+1}, v{a+2}, v{a+3}')
            s.i(f'ds_write_b64 v15, {vr(a,2)} offset:{(n%3)*1024 + (n//3)*512}', 'qw')
        for rt in range(3): s.i(f'ds_read_b128 {vr(88+4*rt,4)}, v14 offset:{rt*1024}', 'qo')
        s.i(f's_mul_i32 {sT1}, {sL}, 12288\ns_mul_i32 {sT2}, {sW}, 3072\ns_add_u32 {sT1}, {sT1}, {sT2}\ns_add_u32 {sT1}, {sT1}, {WS_Q}')
        if self.fast: s.i(f'v_readfirstlane_b32 {sFAST}, v100')
        s.i('s_waitcnt lgkmcnt(0)')
        self.xstores(s, [f'buffer_store_dwordx4 {vr(88+4*rt,4)}, v1, {WS}, {sT1} offen offset:{rt*1024}' for rt in range(3)], 'qs')
        s.i('s_barrier')
        s.i(f'v_add_u32 v15, {L_Q}, v1')
        for n in range(12): s.i(f'ds_read_b128 {vr(16+4*n,4)}, v15 offset:{n*1024}', 'q')
        s.i(f's_lshl_b32 {sT0}, {sW}, 13\nv_add_u32 v11, {sT0}, v13')
        for u in range(1, 4): s.i(f'v_xor_b32 v{11+u}, {u<<6}, v11')
        s.i(f's_mul_i32 {sRING}, {sW}, 12288')
        if L_V: s.i(f's_add_u32 {sRING}, {sRING}, {L_V}')
        self.tr_addr(s, 252)
        self.w_col(s, 252)
        s.i('v_lshrrev_b32 v253, 3, v0\nv_lshl_or_b32 v3, v253, 8, v252')
        for i in range(1, 4): s.i(f'v_add_u32 v{3+i}, {1024*i}, v3')
        s.i(f's_lshl_b32 s34, {sG}, 18\ns_and_b32 {sT0}, {sJ}, 1\ns_lshl_b32 {sT0}, {sT0}, 17\ns_add_u32 s34, s34, {sT0}')
        s.i(f's_and_b32 {sT0}, {sW}, 1\ns_lshl_b32 {sT0}, {sT0}, 14\ns_add_u32 s34, s34, {sT0}\ns_lshr_b32 {sT0}, {sW}, 1\ns_lshl_b32 {sT0}, {sT0}, 7\ns_add_u32 s34, s34, {sT0}')
        for t in range(4):
            s.i(f's_lshr_b32 {sT0}, {sJ}, 1\ns_add_u32 {sT0}, {sT0}, {t}\ns_and_b32 {sT0}, {sT0}, 3\ns_lshl_b32 {sT0}, {sT0}, 15\ns_add_u32 s{TAB+t}, {sT0}, s34')
        v_off = lambda k: f's{TAB+(k>>1)}' if k % 2 == 0 else (f's{TAB+(k>>1)}', 8192)
        self.misc_addr(s)
        s.wait(vm='qs')
        self.flag(s, 0, 'qf')
        s.i('s_waitcnt lgkmcnt(0)')
        self.stamp(s, 'qflag')
        RV = 3
        for t in range(4):
            s.i('s_barrier')
            if t == 0: self.stamp(s, 'bK0')
            if t == 3: self.stamp(s, 'bK3')
            if t == 2:
                for u in range(4): s.i(f'v_add_u32 v{11+u}, {L_K[2]}, v{11+u}')
            for it in self.k_reads(t): s.emit(it)
            fill = []
            if t == 2: fill += self.w_dma(V, 0, v_off(0), 'v0') + self.w_dma(V, 1, v_off(1), 'v1')
            if t == 3: fill += self.w_dma(V, 2, v_off(2), 'v2')
            if t > 0: fill += self.max_ops(t-1)
            mm = self.qk_mfmas(t); main = []
            for u in range(4): main += [{'lg': f'k{t}_{u}'}] + mm[6*u:6*u+6]
            s.weave(main, fill, start=1)
        s.i(f'v_mov_b32 v252, 0\nds_write_b32 v250, v252 offset:{M_FLG}', 'fz')
        for x in self.max_ops(3): s.i(x)
        self.max_publish(s, M_MAXA)
        s.i('s_waitcnt lgkmcnt(0)\ns_barrier')
        self.stamp(s, 'bmaxA')
        self.max_fetch(s, M_MAXA, self.MC)
        self.exp_phase(s, L_PA, M_LA)
        s.i('s_waitcnt lgkmcnt(0)\ns_barrier')
        self.stamp(s, 'bPA')
        PF = [192, 204]
        s.i(f's_and_b32 {sT0}, {sW}, 1\ns_mul_i32 {sT0}, {sT0}, 6144\ns_add_u32 {sT0}, {sT0}, {L_PA}\nv_add_u32 v15, {sT0}, v1')
        def p_reads(k, tag): return [(f'ds_read_b128 {vr(PF[k&1]+4*rt,4)}, v15 offset:{(k>>1)*12288 + (k&1)*3072 + rt*1024}', tag) for rt in range(3)]
        T = self.TMP
        for rt in range(3): s.i(f'ds_read_b128 {vr(T+4*rt,4)}, v251 offset:{M_LA + rt*256}', 'la')
        for it in p_reads(0, 'a0'): s.emit(it)
        s.wait(vm='v0')
        for it in self.w_reads(64, 0, 'a0'): s.emit(it)
        st = []
        for rt in range(3):
            r = T + 4*rt
            st += [f'v_add_f32 v{r}, v{r}, v{r+1}', f'v_add_f32 v{r+2}, v{r+2}, v{r+3}', f'v_add_f32 v{r}, v{r}, v{r+2}',
                   f'v_rcp_f32 v{232+rt}, v{r}', f'v_log_f32 v{r}, v{r}']
        st += [f'v_add_f32 v{228+rt}, v{T+4*rt}, v{self.MC+rt}' for rt in range(3)]
        for k in range(8):
            s.wait(lg=f'a{k}')
            self.stamp(s, f'pva:{k}')
            if k % 2 == 0: self.stamp(s, f'exp:pv{k}')
            fill = []
            if k + RV < 8: fill += self.w_dma(V, k % RV, v_off(k+RV), f'v{k+RV}')
            if k + 1 < 8: fill += p_reads(k+1, f'a{k+1}') + [{'vm': f'v{k+1}'}] + self.w_reads(64+16*(k+1), (k+1) % RV, f'a{k+1}')
            if k == 7: fill += st
            s.weave(self.g_mfmas(64+16*k, PF[k&1], k == 0, (2, 3, 0, 1) if k == 7 else (0, 1, 2, 3)), fill)
        s.i(f'v_add_u32 v14, {sRING}, v1\ns_xor_b32 {sT0}, {sW}, 1\ns_mul_i32 {sT0}, {sT0}, 12288')
        if L_V: s.i(f's_add_u32 {sT0}, {sT0}, {L_V}')
        s.i(f'v_add_u32 v13, {sT0}, v1')
        for n in range(6): s.i(f'ds_write_b128 v14, {vr(40+4*n,4)} offset:{n*1024}', 'pw')
        s.i(f'v_add_u32 v15, {L_PB - L_PA}, v15' if L_PB > L_PA else f'v_subrev_u32 v15, {L_PA - L_PB}, v15')
        s.i('s_waitcnt lgkmcnt(0)\ns_barrier')
        self.stamp(s, 'bPB')
        RC = 192
        for n in range(6): s.i(f'ds_read_b128 {vr(RC+4*n,4)}, v13 offset:{n*1024}', f'pr{n}')
        for n in range(6):
            s.wait(lg=f'pr{n}')
            for e in range(4): s.i(f'v_add_f32 v{16+4*n+e}, v{16+4*n+e}, v{RC+4*n+e}')
        for it in p_reads(0, 'c0'): s.emit(it)
        for n in range(6):
            a = 16 + 4*n; rt = n % 3; d = 216 + 4*rt + 2*(n//3)
            for e in range(4): s.i(f'v_mul_f32 v{a+e}, v{a+e}, v{232+rt}')
            s.i(f'v_cvt_pk_bf16_f32 v{d}, v{a}, v{a+1}\nv_cvt_pk_bf16_f32 v{d+1}, v{a+2}, v{a+3}')
        s.i(f's_lshl2_add_u32 {sT1}, {sL}, {sW}\ns_lshl_b32 {sT1}, {sT1}, 12\ns_add_u32 {sT1}, {sT1}, {WS_PO}')
        self.xstores(s, [f'buffer_store_dwordx4 {vr(216+4*n,4)}, v1, {WS}, {sT1} offen offset:{n*1024}' for n in range(4)], 'pos')
        FK = self.opt.get('poflag_k', 4)
        st = [(f'ds_read_b128 {vr(T+4*rt,4)}, v251 offset:{M_MAXB + rt*256}', 'sb') for rt in range(3)] + [{'lg': 'sb'}]
        for rt in range(3):
            r = T + 4*rt
            st += [f'v_max3_f32 v{r}, v{r}, v{r+1}, v{r+2}', f'v_max_f32 v{r}, v{r}, v{r+3}', f'v_mul_f32 v{self.MC+rt}, {sC}, v{r}']
        st2 = [(f'ds_read_b128 {vr(T+4*rt,4)}, v251 offset:{M_LB + rt*256}', 'sc') for rt in range(3)] + [{'lg': 'sc'}]
        for rt in range(3):
            r = T + 4*rt
            st2 += [f'v_add_f32 v{r}, v{r}, v{r+1}', f'v_add_f32 v{r+2}, v{r+2}, v{r+3}', f'v_add_f32 v{r}, v{r}, v{r+2}',
                    f'v_rcp_f32 v{232+rt}, v{r}', f'v_log_f32 v{r}, v{r}']
        st2 += [f'v_add_f32 v{self.MC+rt}, v{T+4*rt}, v{self.MC+rt}' for rt in range(3)]
        for k in range(8):
            s.wait(lg=f'c{k}')
            self.stamp(s, f'pvb:{k}')
            fill = []
            if k + 1 < 8: fill += p_reads(k+1, f'c{k+1}')
            if k == 1: fill += st
            if k == 2: fill += st2
            s.weave(self.g_mfmas(64+16*k, PF[k&1], k == 0, (2, 3, 0, 1) if k == 7 else (0, 1, 2, 3)), fill)
            if k == FK:
                s.wait(vm='pos'); self.flag(s, 1, 'pof')
        for n in range(6): s.i(f'ds_write_b128 v14, {vr(40+4*n,4)} offset:{6144 + n*1024}', 'pw')
        s.i(f'v_mov_b32 v252, 1\nds_write_b32 v250, v252 offset:{M_FLG}', 'fw')
        self.stamp(s, 'PVB')
        s.i(f's_lshl_b32 {sT2}, {sW}, 3\ns_lshl_b32 {sT2}, 1, {sT2}')
        self.poll(s, sFLG, 4, 1, sT2, sT2)
        s.i(f's_xor_b32 {sT1}, {sL}, 1\ns_lshl2_add_u32 {sT1}, {sT1}, {sW}\ns_lshl_b32 {sT1}, {sT1}, 12\ns_add_u32 {sT1}, {sT1}, {WS_PO}')
        for n in [3, 0, 1, 2]: s.i(f'buffer_load_dwordx4 {vr(216+4*n,4)}, v1, {WS}, {sT1} offen offset:{n*1024} sc1', f'pol{n}')
        lp = self.lab('pair')
        s.i(f'v_xor_b32 v253, 4, v250\ns_mov_b32 {sCNT}, 0')
        s.i(f'{lp}:')
        s.i(f's_add_u32 {sCNT}, {sCNT}, 1\ns_cmp_gt_u32 {sCNT}, {SPIN_MAX}\ns_cbranch_scc1 L_end')
        s.i(f'ds_read_b32 v252, v253 offset:{M_FLG}', 'fr')
        for n in range(6): s.i(f'ds_read_b128 {vr(RC+4*n,4)}, v13 offset:{6144 + n*1024}', 'pr')
        s.i(f's_waitcnt lgkmcnt(0)\nv_readfirstlane_b32 {sT0}, v252\ns_bitcmp1_b32 {sT0}, 0\ns_cbranch_scc0 {lp}')
        s.i(f'v_mov_b32 v252, 3\nds_write_b32 v250, v252 offset:{M_FLG}', 'fw')
        for n in range(24): s.i(f'v_add_f32 v{16+n}, v{16+n}, v{RC+n}')
        s.wait(vm='pol3')
        self.stamp(s, 'pogot')
        for rt in range(3):
            s.i(f'v_sub_f32 v{240+rt}, v{self.MC+rt}, v{228+rt}')
        for rt in range(3): s.i(f'v_exp_f32 v{240+rt}, v{240+rt}')
        for rt in range(3): s.i(f'v_add_f32 v{240+rt}, 1.0, v{240+rt}')
        for rt in range(3): s.i(f'v_rcp_f32 v{240+rt}, v{240+rt}')
        for rt in range(3): s.i(f'v_sub_f32 v{243+rt}, v{228+rt}, v{self.MC+rt}')
        for rt in range(3): s.i(f'v_exp_f32 v{243+rt}, v{243+rt}')
        for rt in range(3): s.i(f'v_add_f32 v{243+rt}, 1.0, v{243+rt}')
        for rt in range(3): s.i(f'v_rcp_f32 v{243+rt}, v{243+rt}')
        for rt in range(3): s.i(f'v_mul_f32 v{232+rt}, v{232+rt}, v{243+rt}')
        for n in range(24): s.i(f'v_mul_f32 v{16+n}, v{16+n}, v{232+(n//4)%3}')
        for rt in range(3):
            s.wait(vm=f'pol{rt}')
            for tt in range(2):
                a = acc(tt, rt); d = 216 + 4*rt + 2*tt
                for h in range(2):
                    s.i(f'v_lshlrev_b32 v246, 16, v{d+h}\nv_and_b32 v247, 0xffff0000, v{d+h}')
                    s.i(f'v_fmac_f32 v{a+2*h}, v246, v{240+rt}\nv_fmac_f32 v{a+2*h+1}, v247, v{240+rt}')
                    s.i(f'v_cvt_pk_bf16_f32 v{d+h}, v{a+2*h}, v{a+2*h+1}')
        s.i(f's_xor_b32 {sT1}, {sL}, 1\ns_mul_i32 {sT1}, {sT1}, 12288\ns_mul_i32 {sT2}, {sW}, 3072\ns_add_u32 {sT1}, {sT1}, {sT2}\ns_add_u32 {sT1}, {sT1}, {WS_O}')
        self.xstores(s, [f'buffer_store_dwordx4 {vr(216+4*rt,4)}, v1, {WS}, {sT1} offen offset:{rt*1024}' for rt in range(3)], 'os')
        self.stamp(s, 'T2')
        s.i(f's_mul_i32 s34, {sG}, {8*12288}\ns_add_u32 s34, s34, {sT2}\ns_add_u32 s34, s34, {WS_O}\ns_mov_b32 {sRING}, {sT2}')
        for t in range(8):
            self.ord_t(s, f's{TAB+t}', t)
            s.i(f's_mul_i32 s{TAB+t}, s{TAB+t}, 12288\ns_add_u32 s{TAB+t}, s{TAB+t}, s34')
        lp = self.lab('done')
        s.i(f's_mov_b32 {sCNT}, 0')
        s.i(f'{lp}:')
        s.i(f's_add_u32 {sCNT}, {sCNT}, 1\ns_cmp_gt_u32 {sCNT}, {SPIN_MAX}\ns_cbranch_scc1 L_end')
        s.i(f'ds_read_b128 v[240:243], v251 offset:{M_FLG}', 'fr')
        s.i(f's_waitcnt lgkmcnt(0)\nv_and_b32 v240, v240, v241\nv_and_b32 v242, v242, v243\nv_and_b32 v240, v240, v242\nv_readfirstlane_b32 {sT0}, v240\ns_bitcmp1_b32 {sT0}, 1\ns_cbranch_scc0 {lp}')
        s.i(f's_lshl2_add_u32 {sT0}, {sG}, {sW}\ns_lshl_b32 {sT0}, {sT0}, 7\ns_add_u32 {sT0}, {sT0}, {WS_OFL}\ns_add_u32 s34, s28, {sT0}\ns_addc_u32 s35, s29, 0')
        s.wait(vm='os')
        self.flag(s, 'o', 'of')
        self.poll(s, 's[34:35]', 0, 8, 1)
        self.stamp(s, 'oflags')
        def o_dma(t):
            s.i(f's_add_u32 m0, {sRING}, {L_O + t*12288}')
            for rt in range(3): s.i(f'buffer_load_dwordx4 v1, {WS}, s{TAB+t} offen offset:{rt*1024} sc1 lds', f'o{t}')
        for t in range(4): o_dma(t)
        for i in range(4):
            s.wait(vm=f'o{2*i+1}')
            s.i('s_barrier')
            if i < 2: o_dma(2*i+4); o_dma(2*i+5)
        self.stamp(s, 'odone'); self.stamp(s, 'cyc1')
        if self.diag: s.i('s_barrier')
        self.dump_stamps(s)
        s.i('s_endpgm')

    def roleB(self, s):
        s.i('L_roleB:')
        self.stamp(s, 'entry')
        skip = self.lab('nopf')
        s.i(f's_cmp_eq_u32 {sW}, 1\ns_cbranch_scc0 {skip}')
        s.i(f's_getpc_b64 s[60:61]\nL_pcref:\ns_sub_u32 s60, s60, L_pcref-{NAME}\ns_subb_u32 s61, s61, 0\ns_mov_b32 s62, L_codeend-{NAME}\ns_mov_b32 s63, 0x20000')
        s.i(f's_lshr_b32 {sT0}, s2, 3\ns_lshl_b32 {sT0}, {sT0}, 11')
        s.out.append(type(s.out[-1])(f'buffer_load_dwordx4 v[16:19], v1, s[60:63], {sT0} offen'))
        s.out.append(type(s.out[-1])(f'buffer_load_dwordx4 v[16:19], v1, s[60:63], {sT0} offen offset:1024'))
        s.i(f'{skip}:')
        s.i('s_waitcnt lgkmcnt(0)')
        s.i(f's_xor_b32 {sT0}, {sL}, 1\ns_lshl_b32 {sT0}, {sT0}, 7\ns_add_u32 s68, s28, {sT0}\ns_addc_u32 s69, s29, 0')
        skip = self.lab('noclr')
        s.i(f's_cmp_eq_u32 {sW}, 0\ns_cbranch_scc0 {skip}')
        s.i(f's_lshl_b32 {sT0}, {sG}, 9\ns_lshl2_add_u32 {sT0}, {sJ}, {sT0}\ns_add_u32 {sT0}, {sT0}, {WS_OFL}\ns_lshl_b32 {sT1}, {sL}, 7')
        s.i(f'v_lshlrev_b32 v3, 7, v0\nv_lshlrev_b32 v5, 2, v0\nv_mov_b32 v4, 0\ns_mov_b64 exec, 15')
        s.out.append(type(s.out[-1])(f'buffer_store_dword v4, v3, {WS}, {sT0} offen sc1'))
        s.out.append(type(s.out[-1])(f'buffer_store_dword v4, v5, {WS}, {sT1} offen sc1'))
        s.i('s_mov_b64 exec, -1')
        s.i(f's_getreg_b32 {sT0}, hwreg(HW_REG_XCC_ID)\ns_and_b32 {sT0}, {sT0}, 15\ns_or_b32 {sT0}, {sT0}, 0x80')
        s.i(f's_and_b32 {sT1}, {sL}, 3\ns_lshl_b32 {sT1}, {sT1}, 3\ns_lshl_b32 {sFAST}, {sT0}, {sT1}')
        s.i(f's_andn2_b32 {sT1}, {sL}, 3\ns_add_u32 s34, s32, {sT1}\ns_addc_u32 s35, s33, 0')
        s.i(f's_waitcnt vmcnt(0)\ns_atomic_or {sFAST}, s[34:35], 0')
        s.i(f'{skip}:')
        for i in range(1, 8):
            for a, b, c in self.x_loads(s, i): s.i(a); s.i(b); s.i(c, 'x')
        c = struct.unpack('<I', struct.pack('<f', math.log2(math.e) / math.sqrt(128)))[0]
        s.i(f's_mov_b32 {sC}, {c:#x}')
        self.row_voff(s, 2, 3, 8)
        self.sw_base(s, 13, 14)
        s.i(f's_lshl_b32 {sT0}, {sW}, 13\nv_add_u32 v11, {sT0}, v13')
        for u in range(1, 4): s.i(f'v_xor_b32 v{11+u}, {u<<6}, v11')
        s.i(f's_lshl_b32 s34, {sG}, 18\ns_and_b32 {sT0}, {sJ}, 1\ns_lshl_b32 {sT0}, {sT0}, 17\ns_add_u32 s34, s34, {sT0}')
        for t in range(4):
            s.i(f's_lshr_b32 {sT0}, {sJ}, 1\ns_add_u32 {sT0}, {sT0}, {t}\ns_and_b32 {sT0}, {sT0}, 3\ns_lshl_b32 {sT0}, {sT0}, 15\ns_add_u32 s{TAB+t}, {sT0}, s34')
        s.i(f's_lshl_b32 {sRING}, {sW}, 10')
        self.misc_addr(s)
        s.i('s_waitcnt vmcnt(0)\ns_barrier')
        self.stamp(s, 'b0')
        for r in range(4): s.i(f'v_mov_b32 v{16+r}, -1')
        s.i(f's_mul_i32 {sT1}, {sL}, 12288\ns_mul_i32 {sT2}, {sW}, 3072\ns_add_u32 {sT1}, {sT1}, {sT2}\ns_add_u32 {sT1}, {sT1}, {WS_S2}')
        for rt in range(3): s.i(f'buffer_store_dwordx4 v[16:19], v1, {WS}, {sT1} offen offset:{rt*1024} sc1', 'clr')
        s.wait(vm='clr')
        self.flag(s, 2, 'cf', always_slow=True)
        skip = self.lab('nodbg'); lp = self.lab('dbg')
        s.i(f's_cmp_eq_u32 {sW}, 0\ns_cbranch_scc0 {skip}')
        s.i(f's_mov_b32 s60, s32\ns_mov_b32 s61, s33\ns_mov_b32 s62, 256\ns_mov_b32 s63, 0x20000\ns_lshl_b32 {sT1}, {sB}, 5\nv_and_b32 v3, 31, v0\ns_mov_b32 {sCNT}, 0')
        s.i(f'{lp}:')
        s.i(f's_add_u32 {sCNT}, {sCNT}, 1\ns_cmp_gt_u32 {sCNT}, {SPIN_MAX}\ns_cbranch_scc1 L_end')
        s.out.append(type(s.out[-1])(f'buffer_load_ubyte v4, v3, s[60:63], {sT1} offen sc1'))
        s.i(f's_waitcnt vmcnt(0)\nv_cmp_eq_u32 vcc, 0, v4\ns_nop 4\ns_cbranch_vccnz {lp}')
        s.i(f's_getreg_b32 {sT0}, hwreg(HW_REG_XCC_ID)\ns_and_b32 {sT0}, {sT0}, 15\ns_or_b32 {sT0}, {sT0}, 0x80\nv_cmp_eq_u32 vcc, {sT0}, v4')
        s.i(f's_lshl_b32 {sT1}, {sHKV}, 3\ns_nop 3\ns_lshr_b32 {sT0}, vcc_lo, {sT1}\ns_and_b32 {sT0}, {sT0}, 0xff\ns_cmp_eq_u32 {sT0}, 0xff\ns_cselect_b32 {sFAST}, 1, 0')
        s.i(f'{skip}:')
        def k_dma(t):
            for n in range(8):
                s.i(f's_add_u32 m0, {sRING}, {L_K[t] + n*4096}\ns_add_u32 {sT3}, s{TAB+t}, {n*4096}')
                s.i(f'buffer_load_dwordx4 v2, {K}, {sT3} offen lds', f'K{t}')
        s.i('s_barrier')
        self.stamp(s, 'b1')
        k_dma(0)
        if self.fast:
            skip = self.lab('nofl')
            s.i(f's_cmp_eq_u32 {sW}, 0\ns_cbranch_scc0 {skip}')
            s.i(f'v_mov_b32 v3, {L_EARLY}\nv_mov_b32 v4, {sFAST}\nds_write_b32 v3, v4\ns_waitcnt lgkmcnt(0)')
            s.i(f'{skip}:')
        s.i('s_barrier')
        s.i('s_barrier')
        k_dma(1)
        for t in range(4):
            if t == 2:
                s.i(f's_lshl_b32 {sT2}, {sW}, 3\ns_lshl_b32 {sT2}, 1, {sT2}')
                self.poll(s, sFLG, 0, 1, sT2, sT2)
                self.stamp(s, 'qseen')
                s.i(f's_xor_b32 {sT1}, {sL}, 1\ns_mul_i32 {sT1}, {sT1}, 12288\ns_mul_i32 {sT2}, {sW}, 3072\ns_add_u32 {sT1}, {sT1}, {sT2}\ns_add_u32 {sT1}, {sT1}, {WS_Q}')
                s.i(f's_add_u32 m0, {sT2}, {L_Q2}')
                for rt in range(3): s.i(f'buffer_load_dwordx4 v1, {WS}, {sT1} offen offset:{rt*1024} sc1 lds', 'q2')
            s.wait(vm='q2' if t == 3 else f'K{t}')
            s.i('s_waitcnt lgkmcnt(0)\ns_barrier')
            if t < 2: k_dma(t+2)
            if t == 2:
                for u in range(4): s.i(f'v_add_u32 v{11+u}, {L_K[2]}, v{11+u}')
            for it in self.k_reads(t): s.emit(it)
        s.i(f'v_add_u32 v15, {L_Q2}, v1')
        s.wait(lg='k3_1')
        for n in range(12): s.i(f'ds_read_b128 {vr(16+4*n,4)}, v15 offset:{n*1024}', 'q')
        s.i('s_waitcnt lgkmcnt(0)\ns_barrier')
        self.stamp(s, 'bmaxA')
        for t in range(4):
            s.weave(self.qk_mfmas(t), self.max_ops(t-1) if t else [], start=6)
        for x in self.max_ops(3): s.i(x)
        self.max_publish(s, M_MAXB)
        self.stamp(s, 'QKB')
        s.i('s_waitcnt lgkmcnt(0)\ns_barrier')
        self.max_fetch(s, M_MAXB, self.MC)
        self.exp_phase(s, L_PB, M_LB)
        s.i(f's_mul_i32 {sRING}, {sW}, 12288\ns_add_u32 {sRING}, {sRING}, {L_WO}')
        self.tr_addr(s, 252)
        self.w_col(s, 252)
        s.i('v_lshrrev_b32 v253, 3, v0\nv_lshl_or_b32 v3, v253, 11, v252')
        for i in range(1, 4): s.i(f'v_add_u32 v{3+i}, {15360*i}, v3')
        s.i(f's_lshl_b32 s34, {sHKV}, 21\ns_and_b32 {sT0}, {sW}, 1\ns_lshl_b32 {sT0}, {sT0}, 17\ns_add_u32 s34, s34, {sT0}')
        s.i(f's_lshl_b32 {sT0}, {sJ}, 8\ns_add_u32 s34, s34, {sT0}\ns_lshr_b32 {sT0}, {sW}, 1\ns_lshl_b32 {sT0}, {sT0}, 7\ns_add_u32 s34, s34, {sT0}')
        for t in range(8):
            self.ord_t(s, f's{TAB+t}', t)
            s.i(f's_lshl_b32 s{TAB+t}, s{TAB+t}, 18\ns_add_u32 s{TAB+t}, s{TAB+t}, s34')
        wo_off = lambda k: f's{TAB+(k>>1)}' if k % 2 == 0 else (f's{TAB+(k>>1)}', 32*2048)
        self.stamp(s, 'expB')
        s.i('s_waitcnt lgkmcnt(0)\ns_barrier')
        RW, NP = 3, 10
        PK = lambda k: 64 + 16*(k % NP)
        for k in range(RW):
            for it in self.w_dma(WO, k, wo_off(k), f'w{k}'): s.emit(it)
        s.i(f's_lshl2_add_u32 {sT0}, {sB}, {sW}\ns_lshl3_add_u32 {sT0}, {sT0}, {sJ}\ns_lshl_b32 {sT0}, {sT0}, 7\ns_add_u32 s34, s28, {sT0}\ns_addc_u32 s35, s29, 0')
        self.poll(s, 's[34:35]', 8, 1, '0x01010101')
        s.i(f's_and_b32 {sT0}, {sW}, 1\ns_mul_i32 {sT0}, {sT0}, 6144\nv_add_u32 v11, {sT0}, v1')
        if L_O: s.i(f'v_add_u32 v11, {L_O}, v11')
        s.i('v_add_u32 v12, 49152, v11')
        for k in range(NP):
            s.wait(vm=f'w{k}')
            self.stamp(s, f'pvb:w{k}')
            for it in self.w_reads(PK(k), k % RW, f'r{k}'): s.emit(it)
            s.wait(lg=f'r{k}')
            for it in self.w_dma(WO, k % RW, wo_off(k+RW), f'w{k+RW}'): s.emit(it)
        self.stamp(s, 'parked')
        OF = [224, 236]
        def o_reads(k): return [(f'ds_read_b128 {vr(OF[k&1]+4*rt,4)}, v{11+(k>>3)} offset:{((k>>1)&3)*12288 + (k&1)*3072 + rt*1024}', f'o{k}') for rt in range(3)]
        s.i('s_barrier')
        self.stamp(s, 'bO0')
        for it in o_reads(0): s.emit(it)
        late = {1: 10, 2: 11, 3: 12, 7: 13, 8: 14, 9: 15}
        for k in range(16):
            s.wait(lg=f'o{k}')
            if k % 2 == 0: self.stamp(s, f'p3:{k}')
            if k >= NP: s.wait(lg=f'r{k}')
            fill = []
            if k - 1 in late and late[k-1] + RW < 16:
                kk = late[k-1]
                fill += [{'lg': f'r{kk}'}] + self.w_dma(WO, kk % RW, wo_off(kk+RW), f'w{kk+RW}')
            if k + 1 < 16:
                if (k+1) % 4 == 0: fill += ['s_barrier']
                fill += o_reads(k+1)
            if k in late:
                kk = late[k]
                fill += [{'vm': f'w{kk}'}] + self.w_reads(PK(kk), kk % RW, f'r{kk}')
            s.weave(self.g_mfmas(PK(k), OF[k&1], k == 0, (2, 3, 0, 1) if k == 15 else (0, 1, 2, 3)), fill)
        self.stamp(s, 'P3')
        s.i(f'v_add_u32 v14, {sRING}, v1\ns_xor_b32 {sT0}, {sW}, 1\ns_mul_i32 {sT0}, {sT0}, 12288\ns_add_u32 {sT0}, {sT0}, {L_WO}\nv_add_u32 v13, {sT0}, v1')
        for n in range(6): s.i(f'ds_write_b128 v14, {vr(40+4*n,4)} offset:{n*1024}', 'pw')
        s.i('s_waitcnt lgkmcnt(0)\ns_barrier')
        for n in range(6): s.i(f'ds_read_b128 {vr(64+4*n,4)}, v13 offset:{n*1024}', f'pr{n}')
        for n in range(6):
            s.wait(lg=f'pr{n}')
            for e in range(4): s.i(f'v_add_f32 v{16+4*n+e}, v{16+4*n+e}, v{64+4*n+e}')
        s.i(f's_cmp_eq_u32 {sW}, {sHKV}\ns_cbranch_scc1 L_recv')
        r = s.fork('B')
        for n in range(6):
            a = 16 + 4*n; d = 64 + 4*(n % 3) + 2*(n//3)
            s.i(f'v_cvt_pk_bf16_f32 v{d}, v{a}, v{a+1}\nv_cvt_pk_bf16_f32 v{d+1}, v{a+2}, v{a+3}')
        for n in range(12): s.i(f'v_min_u32 v{64+n}, -2, v{64+n}')
        s.i(f's_lshl2_add_u32 {sT1}, {sB}, {sW}\ns_lshl3_add_u32 {sT1}, {sT1}, {sJ}\ns_mul_i32 {sT1}, {sT1}, 12288\ns_mul_i32 {sT2}, {sHKV}, 3072\ns_add_u32 {sT1}, {sT1}, {sT2}\ns_add_u32 {sT1}, {sT1}, {WS_S2}')
        for rt in range(3): s.i(f'buffer_store_dwordx4 {vr(64+4*rt,4)}, v1, {WS}, {sT1} offen offset:{rt*1024} sc1', 's2')
        saved = list(self.stamps['B'])
        self.stamp(s, 'sent'); self.stamp(s, 'got'); self.stamp(s, 'end')
        self.dump_stamps(s)
        s.i('s_endpgm')
        self.stamps['B'] = saved
        r.i('L_recv:')
        self.stamp(r, 'sent')
        r.i(f's_mul_i32 {sT1}, {sL}, 12288\ns_add_u32 {sT1}, {sT1}, {WS_S2}')
        for n in range(1, 4):
            r.i(f's_add_u32 {sT0}, {sHKV}, {n}\ns_and_b32 {sT0}, {sT0}, 3\ns_mul_i32 {sT0}, {sT0}, 3072\ns_add_u32 s{TAB+n}, {sT0}, {sT1}')
        r.i('v_and_b32 v2, 15, v0\nv_lshlrev_b32 v2, 11, v2\nv_bfe_u32 v3, v0, 4, 1\nv_lshl_or_b32 v2, v3, 5, v2\nv_lshrrev_b32 v3, 5, v0\nv_lshl_or_b32 v2, v3, 4, v2')
        r.i(f's_mul_i32 s{TAB+4}, {sB}, {48*2048}\ns_lshl_b32 {sT0}, {sJ}, 8\ns_add_u32 s{TAB+4}, s{TAB+4}, {sT0}\ns_lshl_b32 {sT0}, {sHKV}, 6\ns_add_u32 s{TAB+4}, s{TAB+4}, {sT0}')
        r.i(f's_add_u32 s{TAB+5}, s{TAB+4}, {16*2048}\ns_add_u32 s{TAB+6}, s{TAB+4}, {32*2048}')
        lp = self.lab('s2')
        r.i(f's_mov_b32 {sCNT}, 0')
        r.i(f'{lp}:')
        r.i(f's_add_u32 {sCNT}, {sCNT}, 1\ns_cmp_gt_u32 {sCNT}, {SPIN_MAX}\ns_cbranch_scc1 L_end')
        for n in range(3):
            for rt in range(3): r.i(f'buffer_load_dwordx4 {vr(64+12*n+4*rt,4)}, v1, {WS}, s{TAB+1+n} offen offset:{rt*1024} sc1', 'in')
        r.i('s_waitcnt vmcnt(0)')
        r.i('v_max3_u32 v4, v64, v65, v66\nv_max3_u32 v5, v67, v68, v69')
        for n in range(70, 100, 4):
            r.i(f'v_max3_u32 v4, v4, v{n}, v{n+1}')
            if n + 3 < 100: r.i(f'v_max3_u32 v5, v5, v{n+2}, v{n+3}')
        r.i(f'v_max_u32 v4, v4, v5\nv_cmp_eq_u32 vcc, -1, v4\ns_nop 4\ns_cbranch_vccnz {lp}')
        self.stamp(r, 'got')
        for rt in range(3):
            for n in range(3):
                for tt in range(2):
                    a = acc(tt, rt); d = 64 + 12*n + 4*rt + 2*tt
                    for h in range(2):
                        r.i(f'v_lshlrev_b32 v4, 16, v{d+h}\nv_and_b32 v5, 0xffff0000, v{d+h}')
                        r.i(f'v_add_f32 v{a+2*h}, v{a+2*h}, v4\nv_add_f32 v{a+2*h+1}, v{a+2*h+1}, v5')
            o = 100 + 4*rt
            for tt in range(2):
                a = acc(tt, rt)
                r.i(f'v_cvt_pk_bf16_f32 v{o+2*tt}, v{a}, v{a+1}\nv_cvt_pk_bf16_f32 v{o+2*tt+1}, v{a+2}, v{a+3}')
            r.i(f'v_permlane16_swap_b32 v{o}, v{o+2}\nv_permlane16_swap_b32 v{o+1}, v{o+3}')
            r.i(f'buffer_store_dwordx4 {vr(o,4)}, v2, {OUT}, s{TAB+4+rt} offen', 'out')
        if self.diag: r.i('s_waitcnt vmcnt(0)')
        self.stamp(r, 'end')
        self.dump_stamps(r)
        if self.opt.get('amp'):
            r.i('s_waitcnt vmcnt(0) lgkmcnt(0)\ns_memrealtime s[74:75]\ns_sub_u32 s72, s72, s70\ns_min_u32 s72, s72, 10000\ns_mul_i32 s72, s72, 8\ns_waitcnt lgkmcnt(0)')
            r.i('L_amp:\ns_memrealtime s[76:77]\ns_waitcnt lgkmcnt(0)\ns_sub_u32 s76, s76, s74\ns_cmp_lt_u32 s76, s72\ns_cbranch_scc1 L_amp')
        r.i('L_end:\ns_endpgm')
        return r

    def build(self):
        p = self.prologue()
        a = p.fork('A'); b = p.fork('B')
        self.roleA(a)
        r = self.roleB(b)
        ll = '; @launch grid=(256,1,1) block=(512,1,1) lds=163840'
        lst = self.opt.get('list')
        if lst:
            ll = '\n'.join(f'; @launch kernel={NAME} grid=(256,1,1) block=(512,1,1) lds=163840' if ch == 'K' else '; @launch kernel=e_kernel grid=(8,1,1) block=(64,1,1) lds=0' for ch in lst)
        o = [HDR, ll,
             '.amdgcn_target "amdgcn-amd-amdhsa--gfx950"', '.text', f'.globl {NAME}', '.p2align 8', f'.type {NAME},@function', f'{NAME}:',
             p.text(), a.text(), 'L_end0:\n    s_endpgm', b.text(), r.text(), 'L_codeend:',
             f'''.section .rodata,"a"
.p2align 6
.amdhsa_kernel {NAME}
  .amdhsa_next_free_vgpr 256
  .amdhsa_next_free_sgpr 102
  .amdhsa_accum_offset 256
  .amdhsa_group_segment_fixed_size 0
  .amdhsa_kernarg_size 64
  .amdhsa_user_sgpr_count 2
  .amdhsa_user_sgpr_kernarg_segment_ptr 1
  .amdhsa_system_sgpr_workgroup_id_x 1
.end_amdhsa_kernel''']
        if lst:
            o.insert(-1, '.globl e_kernel\n.p2align 8\n.type e_kernel,@function\ne_kernel:\n    s_endpgm')
            o.append(o[-1].split('.p2align 6')[1].replace(NAME, 'e_kernel').replace('\n.amdhsa_kernel', '.p2align 6\n.amdhsa_kernel'))
        self.nops = (a.nops, b.nops, r.nops)
        return '\n'.join(o) + '\n'

if __name__ == '__main__':
    opts = dict(kv.split('=') for kv in sys.argv[1:] if '=' in kv)
    opts = {k: (int(v) if v.lstrip('-').isdigit() else v) for k, v in opts.items()}
    g = Gen(diag='diag' in sys.argv, fast='slow' not in sys.argv, **opts)
    t = g.build()
    out = [a for a in sys.argv[1:] if a.endswith('.s')]
    open(out[0] if out else 'k.s', 'w').write(t)
    print('nops', g.nops, 'lines', t.count('\n'), g.stamps)
```

```python
import math, struct, sys
from asmlib import Stream, Ins

NAME = 'standalone__gqa_block_cached__near_ridge_kernel'
HDR = open('standalone__gqa_block_cached__near_ridge.s.ref').read().split('; Override launch')[0].rstrip()

WS_FLAGS, WS_OFL, WS_X, WS_S2, WS_STAMP = 0, 0x8000, 0x10000, 0x800000, 0x1000000
SL = [0, 45056, 90112]; SLW = 12288
L_Q = 135168; L_Q2 = 90112
L_V = 0; L_MISC = 49152; L_SPARE = 53248
L_PB = 65536; L_PA = 114688
L_O = 65536
M_MAXA, M_MAXB, M_LA, M_LB, M_FLG = 0, 768, 1536, 2304, 3072
X, K, V, WQ, WO, OUT, WS = 's[4:7]', 's[8:11]', 's[12:15]', 's[16:19]', 's[20:23]', 's[24:27]', 's[28:31]'
sW, sHKV, sBH, sBL, sJ, sB, sG, sL = 's36', 's37', 's38', 's39', 's40', 's41', 's42', 's43'
sRING, sC, sCNT, sFAST = 's44', 's45', 's46', 's47'
TAB = 48
sT0, sT1, sT2, sT3 = 's56', 's57', 's58', 's59'
POLL = 60
sFLG = 's[68:69]'
STAMP0 = 70
SPIN_MAX = 1 << 20
CEXP = struct.unpack('<I', struct.pack('<f', math.log2(math.e) / math.sqrt(128)))[0]

def vr(a, n): return f'v[{a}:{a+n-1}]'
def mfma(d, a, b, c=None):
    return f'v_mfma_f32_16x16x32_bf16 {vr(d,4)}, {vr(a,4)}, {vr(b,4)}, {vr(c,4) if c is not None else 0}'
ACC = 16
def acc(t, rt): return ACC + (t*3 + rt)*4
PARK = [160, 176, 96, 112, 64, 80, 128, 144, 192, 208]
ORD_A = [(0, 0), (0, 1), (0, 2), (0, 3), (1, 0), (1, 1), (1, 2), (1, 3)]
ORD_B = [(0, 0), (1, 0), (0, 1), (0, 2), (0, 3), (1, 1), (1, 2), (1, 3)]
ORD_C = [(0, 0), (0, 1), (1, 0), (0, 2), (0, 3), (1, 1), (1, 2), (1, 3)]
ORDS = dict(A=ORD_A, B=ORD_B, C=ORD_C)

DEFAULTS = dict(seq='wwwwwwKwVw', wqord='A', woord='A', p1bar=12, vpre=0, vq=0, qpoll='v', clrB=1, vmid=3, vnext=1, vb0=0, vbs=3, pfm='60,95', cfm=56, poisonm=40,
                wpark='', np0=10, pk=4, opoll='v', prioB=1, slowflag=0, qb='4,4', touch=1, qslate=0, pre=1,
                v1g=4, b1g=12, spre=0, poearly=1, clru=3, pf=1, wog='14,14,14', k2late=0, wdA=6, wdB=2)
NS = 10
slot = lambda si: (si + 2) % 3
TORD = (2, 1, 3, 0)
VA = [None]*4 + [(k*8192, k*8192 + 4096) for k in range(6)] + [(53248 + k*8192, 57344 + k*8192) for k in range(4)] + \
     [(102400, 106496), (86016, 110592)]
M_FB = 3328
def Vreg(k): return 160 + 8*k if k < 4 else 64 + 8*(k-4)

class Gen:
    def __init__(self, diag=False, fast=True, **opt):
        self.diag = diag; self.fast = fast
        self.opt = dict(DEFAULTS); self.opt.update(opt)
        self.nlab = 0
        self.cold = []
        self.stamps = {'A': [], 'B': [], 'P': []}
        seq = self.opt['seq']; assert len(seq) == NS and seq[:2] == 'ww' and seq[-1] == 'w' and sorted(seq) == sorted('KVwwwwwwww')
        self.steps = []; n = 0
        for ch in seq:
            if ch == 'w': self.steps.append(('w', n)); n += 1
            else: self.steps.append((ch.lower(), 0))
        self.steps += [('k', t) for t in (1, 2, 3)]

    def ints(self, k): return [int(x) for x in str(self.opt[k]).split(',') if x != '']

    def lab(self, p):
        self.nlab += 1
        return f'L_{p}_{self.nlab}'

    def raw(self, s, text): s.out.append(Ins(text))

    def stamp(self, s, name):
        amp = self.opt.get('amp')
        if amp and s.name == 'B' and name == amp: s.i('s_memrealtime s[72:73]')
        if not self.diag: return
        foc = self.opt.get('focus')
        if ':' in name:
            if name.split(':')[0] != foc: return
        elif foc and name not in ('entry', 'sent', 'got', 'end') and name not in self.opt.get('keep', '').split(','): return
        l = self.stamps[s.name]; n = len(l); l.append(name)
        assert n < 16, l
        s.i(f'{"s_memtime" if (name.startswith("cyc") or self.opt.get("cyc")) else "s_memrealtime"} s[{STAMP0+2*n}:{STAMP0+2*n+1}]')

    def dump_stamps(self, s):
        if not self.diag: return
        n = len(self.stamps[s.name])
        s.i('s_waitcnt vmcnt(0) lgkmcnt(0)')
        s.i(f's_lshl_b32 {sT0}, s2, 3\ns_add_u32 {sT0}, {sT0}, {sW}')
        if s.name == 'B': s.i(f's_add_u32 {sT0}, {sT0}, 4')
        s.i(f's_lshl_b32 {sT0}, {sT0}, 7\ns_add_u32 {sT0}, {sT0}, {WS_STAMP}\nv_mov_b32 v1, 0')
        for k in range(n):
            s.i(f'v_mov_b32 v2, s{STAMP0+2*k}\nbuffer_store_dword v2, v1, {WS}, {sT0} offen offset:{4*k}\ns_waitcnt vmcnt(0)')

    def spin_head(self, s, p):
        lp = self.lab(p)
        s.i(f's_mov_b32 {sCNT}, 0\n{lp}:')
        s.i(f's_add_u32 {sCNT}, {sCNT}, 1\ns_cmp_gt_u32 {sCNT}, {SPIN_MAX}\ns_cbranch_scc1 L_end')
        return lp

    def and8(self, s):
        s.i(f's_and_b64 s[{POLL}:{POLL+1}], s[{POLL}:{POLL+1}], s[{POLL+2}:{POLL+3}]')
        s.i(f's_and_b64 s[{POLL+4}:{POLL+5}], s[{POLL+4}:{POLL+5}], s[{POLL+6}:{POLL+7}]')
        s.i(f's_and_b64 s[{POLL}:{POLL+1}], s[{POLL}:{POLL+1}], s[{POLL+4}:{POLL+5}]')
        s.i(f's_and_b32 s{POLL}, s{POLL}, s{POLL+1}')

    def poll(self, s, mode, sOFF, off, n, want, mask=None):
        if mode == 's':
            s.i(f's_add_u32 s34, s28, {sOFF}\ns_addc_u32 s35, s29, 0')
            s.i('s_waitcnt lgkmcnt(0)')
            lp = self.spin_head(s, 'poll')
            if n == 1: s.i(f's_load_dword s{POLL}, s[34:35], {off} glc')
            else: s.i(f's_load_dwordx{n} s[{POLL}:{POLL+n-1}], s[34:35], {off} glc')
            s.i('s_waitcnt lgkmcnt(0)')
            if n == 8: self.and8(s)
            if mask is not None: s.i(f's_and_b32 s{POLL}, s{POLL}, {mask}')
            s.i(f's_cmp_eq_u32 s{POLL}, {want}\ns_cbranch_scc0 {lp}')
        else:
            s.i(f'v_and_b32 v253, {n-1}, v0\nv_lshlrev_b32 v253, 2, v253')
            lp = self.spin_head(s, 'poll')
            s.i(f'buffer_load_dword v252, v253, {WS}, {sOFF} offen offset:{off} sc1', 'poll')
            s.i('s_waitcnt vmcnt(0)')
            if mask is not None: s.i(f'v_and_b32 v252, {mask}, v252')
            s.i(f'v_cmp_ne_u32 vcc, {want}, v252\ns_nop 4\ns_cbranch_vccnz {lp}')

    def xstores(self, s, items, tag):
        isst = lambda t: t.startswith('buffer')
        if not self.fast:
            for t in items: s.i(t + (' sc1' if isst(t) else ''), tag)
            return
        a, b = self.lab('slow'), self.lab('join')
        s.i(f's_cmp_eq_u32 {sFAST}, 0\ns_cbranch_scc1 {a}')
        for t in items: s.i(t, tag)
        s.i(f'{b}:')
        self.cold += [f'{a}:'] + ['    ' + t + (' sc1' if isst(t) else '') for t in items] + ['    s_nop 0', f'    s_branch {b}']

    def flag_setup(self, s):
        s.i('v_lshlrev_b32 v254, 25, v0\nv_min_u32 v254, 0x1000000, v254\nv_lshlrev_b32 v254, 4, v254\nv_mov_b32 v255, 1')
        s.i(f's_lshl_b32 s68, {sL}, 7\ns_add_u32 s68, s68, {sW}')
        s.i(f's_lshl2_add_u32 s69, {sG}, {sW}\ns_lshl_b32 s69, s69, 7\ns_lshl2_add_u32 s69, {sJ}, s69\ns_add_u32 s69, s69, {WS_OFL}')

    def flag(self, s, kind, tag, always_slow=False):
        st = f'buffer_store_byte v255, v254, {WS}, ' + (f's69 offen' if kind == 'o' else f's68 offen offset:{kind*4}')
        if always_slow or self.opt['slowflag']: s.i(st + ' sc1', tag)
        else: self.xstores(s, [st], tag)

    def fast_test(self, s, part):
        if not self.fast: return
        if self.opt.get('nodbg'):
            s.i(f's_mov_b32 {sFAST}, 1'); return
        if part == 0:
            s.i(f's_lshl_b32 {sT0}, {sG}, 3\ns_add_u32 s34, s32, {sT0}\ns_addc_u32 s35, s33, 0\ns_load_dwordx2 s[{POLL}:{POLL+1}], s[34:35], 0')
            s.i(f's_getreg_b32 {sT0}, hwreg(HW_REG_XCC_ID)\ns_and_b32 {sT0}, {sT0}, 15\ns_or_b32 {sT0}, {sT0}, 0x80\ns_mul_i32 s62, {sT0}, 0x01010101\ns_mov_b32 s63, s62')
        else:
            s.i(f's_waitcnt lgkmcnt(0)\ns_cmp_eq_u64 s[{POLL}:{POLL+1}], s[62:63]\ns_cselect_b32 {sFAST}, 1, 0')

    def xb_off(self, s, dst, partner):
        if partner: s.i(f's_xor_b32 {dst}, {sL}, 1\ns_lshl2_add_u32 {dst}, {dst}, {sW}')
        else: s.i(f's_lshl2_add_u32 {dst}, {sL}, {sW}')
        s.i(f's_lshl_b32 {dst}, {dst}, 12\ns_add_u32 {dst}, {dst}, {WS_X}')

    def w_dma(self, srd, slot, soff, tag, ring=sRING, vo=3):
        it = [f's_add_u32 m0, {ring}, {slot*4096}']
        if isinstance(soff, tuple):
            it.append(f's_add_u32 {sT3}, {soff[0]}, {soff[1]}'); soff = sT3
        for i in range(4):
            it.append((f'buffer_load_dwordx4 v{vo+i}, {srd}, {soff} offen offset:{i*1024} lds', tag))
        return it

    def w_reads(self, dst, slot, tag, ad=7):
        it = []
        for t in range(4):
            it.append((f'ds_read_b64_tr_b16 {vr(dst+4*t,2)}, v{ad+t} offset:{slot*4096}', tag))
            it.append((f'ds_read_b64_tr_b16 {vr(dst+4*t+2,2)}, v{ad+t} offset:{slot*4096+2048}', tag))
        return it

    def g_mfmas(self, wreg, breg, first, order=(0, 1, 2, 3)):
        return [mfma(acc(t, rt), wreg+4*t, breg+4*rt, None if first else acc(t, rt)) for t in order for rt in range(3)]

    def stream_setup(self, s, shift, step):
        s.i(f's_mul_i32 {sRING}, {sW}, 12288')
        if L_V: s.i(f's_add_u32 {sRING}, {sRING}, {L_V}')
        s.i(f'v_lshrrev_b32 v252, 2, v0\nv_bfe_u32 v253, v0, 3, 2')
        s.i(f's_and_b32 {sT0}, {sW}, 1\ns_lshl_b32 {sT0}, {sT0}, 1')
        s.i(f'v_xor_b32 v253, {sT0}, v253\nv_lshlrev_b32 v253, 5, v253\nv_lshl_or_b32 v252, v252, 7, v253')
        s.i(f'v_and_b32 v253, 3, v0\nv_lshl_or_b32 v252, v253, 3, v252')
        for t in range(4):
            s.i(f'v_xor_b32 v253, {t<<5}, v252\nv_add_u32 v{7+t}, {sRING}, v253')
        s.i(f'v_lshrrev_b32 v252, 3, v0\nv_and_b32 v252, 6, v252\nv_xor_b32 v252, v252, v0\nv_and_b32 v252, 7, v252\nv_lshlrev_b32 v252, 4, v252')
        s.i(f'v_lshrrev_b32 v253, 3, v0\nv_lshl_or_b32 v3, v253, {shift}, v252')
        for i in range(1, 4): s.i(f'v_add_u32 v{3+i}, {step*i}, v3')

    def ord_t(self, s, dst, o):
        flip, rot = o
        if rot: s.i(f's_add_u32 {dst}, {sBL}, {rot}\ns_and_b32 {dst}, {dst}, 3')
        src = dst if rot else sBL
        if flip: s.i(f's_xor_b32 {sT1}, {sBH}, 1\ns_lshl2_add_u32 {dst}, {sT1}, {src}')
        else: s.i(f's_lshl2_add_u32 {dst}, {sBH}, {src}')

    def k_addr(self, s):
        s.i('v_bfe_u32 v252, v0, 4, 1\nv_lshrrev_b32 v253, 5, v0\nv_lshl_or_b32 v252, v252, 1, v253\nv_xor_b32 v252, v252, v0\nv_and_b32 v252, 15, v252\nv_lshlrev_b32 v252, 4, v252')
        s.i(f'v_and_b32 v253, 15, v0\nv_lshl_or_b32 v252, v253, 8, v252\ns_lshl_b32 {sT0}, {sW}, 13\nv_add_u32 v2, {sT0}, v252')

    k3alt = False
    def Kreg(self, t, kt, u):
        if t == 3 and self.k3alt: return [88, 92, 120, 124, 216, 220, 224, 228][kt*4 + u]
        return 64 + 32*t + (kt*4 + u)*4
    def Sreg(self, t, kt, rt): return (192 if t == 0 else 64 + 32*(t-1)) + (kt*3 + rt)*4
    def Qreg(self, u, rt): return 16 + (u*3 + rt)*4
    MX, MC, LACC, ONES, TMP = 232, 235, 216, 228, 238

    def k_reads(self, t, base='v2'):
        sl = slot(self.steps.index(('k', t)))
        it = [f'v_add_u32 v11, {SL[sl] + SLW}, {base}'] + [f'v_xor_b32 v{11+u}, {u<<6}, v11' for u in range(1, 4)]
        return it + [(f'ds_read_b128 {vr(self.Kreg(t,kt,u),4)}, v{11+u} offset:{kt*4096}', f'k{t}') for u in range(4) for kt in range(2)]

    def qk_mfmas(self, t, tilemajor=False):
        idx = [(u, kt, rt) for u in range(4) for kt in range(2) for rt in range(3)]
        if tilemajor: idx = [(u, kt, rt) for kt in range(2) for u in range(4) for rt in range(3)]
        return [mfma(self.Sreg(t,kt,rt), self.Kreg(t,kt,u), self.Qreg(u,rt), None if u == 0 else self.Sreg(t,kt,rt)) for u, kt, rt in idx]

    def max_ops(self, t, kts=(0, 1)):
        it = []
        for kt in kts:
            for rt in range(3):
                r = self.Sreg(t, kt, rt); m = self.MX + rt
                if t == 0 and kt == 0:
                    it.append(f'v_max3_f32 v{m}, v{r}, v{r+1}, v{r+2}'); it.append(f'v_max_f32 v{m}, v{m}, v{r+3}')
                else:
                    it.append(f'v_max3_f32 v{m}, v{m}, v{r}, v{r+1}'); it.append(f'v_max3_f32 v{m}, v{m}, v{r+2}, v{r+3}')
        return it

    def qk_last(self, s, extra, M=lambda x: x):
        mm = [M(x) for x in self.qk_mfmas(3, True)]
        s.weave(mm[:15], self.max_ops(2), start=2)
        s.weave(mm[15:], self.max_ops(3, (0,)) + extra)
        for x in self.max_ops(3, (1,)): s.i(x)

    def max_publish(self, s, moff):
        T = self.TMP
        for sw in ('v_permlane32_swap_b32', 'v_permlane16_swap_b32'):
            for rt in range(3): s.i(f'v_mov_b32 v{T+rt}, v{self.MX+rt}')
            for rt in range(3): s.i(f'{sw} v{self.MX+rt}, v{T+rt}')
            for rt in range(3): s.i(f'v_max_f32 v{self.MX+rt}, v{self.MX+rt}, v{T+rt}')
        self.publish(s, [self.MX + rt for rt in range(3)], moff)

    def publish(self, s, r, off):
        s.i(f's_mov_b64 exec, 0xffff\nv_mov_b32 v{r[2]}, v{r[0]}\ns_mov_b32 exec_lo, 0xffff0000\nv_mov_b32 v{r[2]}, v{r[1]}\ns_mov_b64 exec, -1')
        s.i(f'ds_write_b32 v250, v{r[2]} offset:{off}', 'pub')

    def misc_addr(self, s):
        s.i(f'v_and_b32 v251, 15, v0\nv_lshlrev_b32 v251, 4, v251\nv_add_u32 v251, {L_MISC}, v251')
        s.i(f'v_lshrrev_b32 v250, 4, v0\nv_min_u32 v250, 2, v250\nv_lshlrev_b32 v250, 8, v250')
        s.i(f's_lshl_b32 {sT0}, {sW}, 2\nv_add3_u32 v250, {sT0}, v251, v250')

    def exp_setup(self, pbase):
        return [f's_mul_i32 {sT0}, {sW}, 3072', f's_add_u32 {sT0}, {sT0}, {pbase}', f'v_add_u32 v15, {sT0}, v1']

    def exp_phase(self, s, moff, loff, first, hooks, wd=2):
        T = self.TMP
        for rt in range(3): s.i(f'ds_read_b128 {vr(T+4*rt,4)}, v251 offset:{moff + rt*256}', f'mxr{rt}')
        for r in range(4): s.i(f'v_mov_b32 v{self.ONES+r}, 0x3f803f80')
        for it in first: s.emit(it)
        for rt in range(3):
            s.wait(lg=f'mxr{rt}')
            r = T + 4*rt
            s.i(f'v_max3_f32 v{r}, v{r}, v{r+1}, v{r+2}\nv_max_f32 v{r}, v{r}, v{r+3}\nv_mul_f32 v{self.MC+rt}, {sC}, v{r}')
        groups = [(t, rt) for t in TORD for rt in range(3)]
        def fm(t, rt): return [f'v_fma_f32 v{r}, v{r}, {sC}, -v{self.MC+rt}' for kt in range(2) for r in range(self.Sreg(t,kt,rt), self.Sreg(t,kt,rt)+4)]
        def ex(t, rt): return [f'v_exp_f32 v{r}, v{r}' for kt in range(2) for r in range(self.Sreg(t,kt,rt), self.Sreg(t,kt,rt)+4)]
        def cv(t, rt):
            a, b = self.Sreg(t,0,rt), self.Sreg(t,1,rt)
            return [f'v_cvt_pk_bf16_f32 v{a}, v{a}, v{a+1}', f'v_cvt_pk_bf16_f32 v{a+1}, v{a+2}, v{a+3}',
                    f'v_cvt_pk_bf16_f32 v{a+2}, v{b}, v{b+1}', f'v_cvt_pk_bf16_f32 v{a+3}, v{b+2}, v{b+3}']
        def out(t, rt):
            a = self.Sreg(t,0,rt)
            return [(f'ds_write_b128 v15, {vr(a,4)} offset:{t*12288 + rt*1024}', 'pw'),
                    mfma(self.LACC+4*rt, self.ONES, a, None if t == TORD[0] else self.LACC+4*rt)]
        wq_ = []; nw = 0
        for x in fm(*groups[0]): s.i(x)
        for n, g in enumerate(groups):
            if n % 3 == 0: self.stamp(s, f'exp:{n}')
            for it in hooks.get(('pre', n), []): s.emit(it)
            e = ex(*g)
            nf = fm(*groups[n+1]) if n+1 < len(groups) else []
            pc = cv(*groups[n-1]) if n >= 1 else []
            po = []
            if n >= 2: po.append(out(*groups[n-2])[1]); wq_.append(out(*groups[n-2])[0])
            if n >= wd:
                k = min(len(wq_), -(-(10 - nw) // (12 - n)) if wd > 2 else 1)
                po = wq_[:1] + po; nf = nf[:3] + wq_[1:2][:k-1] + nf[3:6] + wq_[2:k] + nf[6:]
                del wq_[:k]; nw += k
            rest = po + pc + nf
            hk = hooks.get(n, [])
            k = 0; h = 0
            for q in range(0, 8, 2):
                s.i(e[q]); s.i(e[q+1])
                tgt = (len(rest)*(q+2) + 7)//8
                while k < tgt: s.emit(rest[k]); k += 1
                tgt = (len(hk)*(q+2) + 7)//8
                while h < tgt: s.emit(hk[h]); h += 1
        assert not wq_
        for x in out(*groups[-2]): s.emit(x)
        for x in cv(*groups[-1]): s.i(x)
        for x in out(*groups[-1]): s.emit(x)
        for it in hooks.get(12, []): s.emit(it)
        self.publish(s, [self.LACC + 4*rt for rt in range(3)], loff)
        self.stamp(s, 'exp:end')

    def kv_table(self, s, TB):
        s.i(f's_lshl_b32 {sT2}, {sG}, 18\ns_and_b32 {sT0}, {sJ}, 1\ns_lshl_b32 {sT0}, {sT0}, 17\ns_add_u32 {sT2}, {sT2}, {sT0}')
        for t, d in TB.items():
            s.i(f's_lshr_b32 {sT0}, {sJ}, 1\ns_add_u32 {sT0}, {sT0}, {t}\ns_and_b32 {sT0}, {sT0}, 3\ns_lshl_b32 {sT0}, {sT0}, 15\ns_add_u32 {d}, {sT0}, {sT2}')

    def v_dma(self, k, TB, vo, tag):
        it = []
        for h in range(2):
            it += [f's_add_u32 m0, s3, {VA[k][h]}', f's_add_u32 {sT3}, {TB[k >> 2]}, {(k & 3)*8192 + h*4096}',
                   (f'buffer_load_dwordx4 {vo}, {V}, {sT3} offen lds', tag)]
        return it

    def lds_wait(self, s, off, bit, T=240):
        lp = self.spin_head(s, 'lw')
        s.i(f'ds_read_b128 {vr(T,4)}, v251 offset:{off}', 'fr')
        s.i(f's_waitcnt lgkmcnt(0)\nv_and_b32 v{T}, v{T}, v{T+1}\nv_and_b32 v{T+2}, v{T+2}, v{T+3}\nv_and_b32 v{T}, v{T}, v{T+2}\nv_readfirstlane_b32 {sT0}, v{T}\ns_bitcmp1_b32 {sT0}, {bit}\ns_cbranch_scc0 {lp}')

    def prologue(self):
        s = Stream('P')
        if self.opt.get('amp'): s.i('s_memrealtime s[70:71]')
        self.stamp(s, 'entry')
        s.i('s_cmp_ge_u32 s2, 256\ns_cbranch_scc1 L_end')
        for n, d in [(0, 4), (3, 16), (1, 8), (2, 12), (4, 20), (5, 24), (6, 32), (7, 28)]:
            s.i(f's_load_dwordx2 s[{d}:{d+1}], s[0:1], {8*n}')
        s.i('v_lshrrev_b32 v1, 6, v0\nv_and_b32 v0, 63, v0\ns_mov_b32 s7, 0x20000')
        s.i('v_readfirstlane_b32 s3, v1\nv_lshlrev_b32 v1, 4, v0')
        s.i(f's_cmp_lg_u32 s3, 0\ns_cbranch_scc1 L_nopf')
        s.i(f's_getpc_b64 s[60:61]\nL_pcref:\ns_sub_u32 s60, s60, L_pcref-{NAME}\ns_subb_u32 s61, s61, 0\ns_mov_b32 s62, L_codeend-{NAME}\ns_mov_b32 s63, s7')
        s.i(f's_lshr_b32 {sT0}, s2, 3\ns_lshl_b32 {sT0}, {sT0}, 10')
        self.raw(s, f'buffer_load_dwordx4 v[240:243], v1, s[60:63], {sT0} offen')
        s.i('L_nopf:')
        s.i(f's_and_b32 {sHKV}, s2, 3\ns_bfe_u32 {sBH}, s2, 0x10002\ns_lshr_b32 {sBL}, s2, 6\ns_bfe_u32 {sJ}, s2, 0x30003')
        if self.opt.get('jxor'): s.i(f's_xor_b32 {sJ}, {sJ}, {self.opt["jxor"]}')
        if self.opt.get('swapmap'): s.i(f's_bfe_u32 {sBL}, s2, 0x20003\ns_lshr_b32 {sJ}, s2, 5')
        s.i(f's_lshl2_add_u32 {sB}, {sBH}, {sBL}\ns_lshl2_add_u32 {sG}, {sB}, {sHKV}\ns_lshl3_add_u32 {sL}, {sG}, {sJ}\ns_and_b32 {sW}, s3, 3')
        s.i('s_cmp_lt_u32 s3, 4\ns_cbranch_scc1 L_roleA')
        self.stamps['A'] = list(self.stamps['P']); self.stamps['B'] = list(self.stamps['P'])
        return s

    def srds(self, s, lst):
        for d, n in lst:
            s.i(f's_mov_b32 s{d+2}, {n}')
            if d != 4: s.i(f's_mov_b32 s{d+3}, s7')

    def roleA(self, s):
        o = self.opt
        s.i('L_roleA:')
        self.k3alt = True
        self.srds(s, [(28, 256<<20)])
        s.i('s_waitcnt lgkmcnt(0)')
        skip = self.lab('noclr')
        s.i(f's_cmp_eq_u32 {sW}, 0\ns_cbranch_scc0 {skip}')
        s.i(f's_lshl_b32 {sT0}, {sG}, 9\ns_lshl2_add_u32 {sT0}, {sJ}, {sT0}\ns_add_u32 {sT0}, {sT0}, {WS_OFL}\ns_lshl_b32 {sT1}, {sL}, 7')
        s.i(f'v_lshlrev_b32 v3, 7, v0\nv_lshlrev_b32 v5, 2, v0\nv_mov_b32 v4, 0\ns_mov_b64 exec, 15')
        self.raw(s, f'buffer_store_dword v4, v3, {WS}, {sT0} offen sc1')
        self.raw(s, f'buffer_store_dword v4, v5, {WS}, {sT1} offen sc1')
        s.i('s_mov_b64 exec, -1')
        s.i(f's_getreg_b32 {sT0}, hwreg(HW_REG_XCC_ID)\ns_and_b32 {sT0}, {sT0}, 15\ns_or_b32 {sT0}, {sT0}, 0x80')
        s.i(f's_and_b32 {sT1}, {sL}, 3\ns_lshl_b32 {sT1}, {sT1}, 3\ns_lshl_b32 {sFAST}, {sT0}, {sT1}')
        s.i(f's_andn2_b32 {sT1}, {sL}, 3\ns_add_u32 s34, s32, {sT1}\ns_addc_u32 s35, s33, 0')
        s.i(f's_waitcnt vmcnt(0)')
        if not o.get('nodbg'): s.i(f's_atomic_or {sFAST}, s[34:35], 0')
        s.i(f'{skip}:')
        s.i('v_lshrrev_b32 v252, 4, v0\nv_xor_b32 v252, v252, v0\nv_and_b32 v252, 15, v252\nv_lshlrev_b32 v252, 4, v252\nv_and_b32 v253, 15, v0\nv_lshl_or_b32 v196, v253, 8, v252')
        for u in range(1, 4): s.i(f'v_xor_b32 v{196+u}, {u<<6}, v196')
        s.i(f'v_bfe_u32 v252, v0, 2, 3\ns_lshl_b32 {sT0}, {sW}, 1\nv_xor_b32 v252, {sT0}, v252\nv_lshlrev_b32 v252, 5, v252\nv_lshrrev_b32 v253, 2, v0\nv_lshl_or_b32 v252, v253, 8, v252')
        s.i(f'v_and_b32 v253, 3, v0\nv_lshl_or_b32 v200, v253, 3, v252\nv_xor_b32 v201, 32, v200')
        for sl in (1, 2):
            for n in range(6): s.i(f'v_add_u32 v{196+6*sl+n}, {SL[sl]}, v{196+n}')
        self.k_addr(s)
        s.i('v_mov_b32 v7, v200\nv_mov_b32 v8, v201\nv_add_u32 v9, 0x10000, v200\nv_add_u32 v10, 0x10000, v201')
        s.i('v_and_b32 v4, 15, v0\nv_lshlrev_b32 v4, 4, v4')
        s.i(f's_mul_i32 s{TAB}, {sL}, 12288\ns_mul_i32 {sT0}, {sW}, 3072\ns_add_u32 s{TAB}, s{TAB}, {sT0}\ns_add_u32 s{TAB}, s{TAB}, {WS_S2}')
        s.i(f's_cmp_eq_u32 {sW}, {sHKV}\ns_cselect_b32 s{TAB}, 0x10000000, s{TAB}')
        self.flag_setup(s)
        self.misc_addr(s)
        s.i(f's_mov_b32 {sC}, {CEXP:#x}')
        sXO, sXP = f's{TAB+4}', f's{TAB+5}'
        self.xb_off(s, sXO, False); self.xb_off(s, sXP, True)
        s.i(f's_mul_i32 {sT0}, {sW}, 3072\ns_add_u32 {sT0}, {sT0}, {L_Q}\nv_add_u32 v15, {sT0}, v1\nv_add_u32 v249, {L_Q}, v1')
        WB = [40, 96]; XB = [112, 136]
        def reads(n, sl):
            half = n & 1; A0 = 196 + 6*sl; it = []
            for ks in range(2):
                u = 2*half + ks
                it += [(f'ds_read_b128 {vr(XB[half]+12*ks+4*rt,4)}, v{A0+u} offset:{rt*4096}', f'r{n}_{ks}') for rt in range(3)]
                for tt in range(2):
                    for h in range(2):
                        it.append((f'ds_read_b64_tr_b16 {vr(WB[half]+8*ks+4*tt+2*h,2)}, v{A0+4+tt} offset:{SLW + u*8192 + h*4096}', f'r{n}_{ks}'))
            return it
        def mf(n):
            half = n & 1; it = []
            for ks in range(2):
                it.append({'lg': f'r{n}_{ks}'})
                it += [mfma(acc(tt, rt), WB[half]+8*ks+4*tt, XB[half]+12*ks+4*rt, None if (n == 0 and ks == 0) else acc(tt, rt)) for tt in range(2) for rt in range(3)]
            return it
        pend = []
        for si, (kind, t) in enumerate(self.steps[:NS]):
            s.i('s_barrier')
            if si == 0: self.stamp(s, 'b0')
            self.stamp(s, f'p1:{si}')
            if kind == 'k':
                s.weave(pend + ['s_nop 0'], self.k_reads(0), per=3); pend = []
                s.wait(lg='k0')
            elif kind == 'v':
                rd = [(f'ds_read_b64_tr_b16 {vr(Vreg(k)+4*tt+2*h,2)}, v{196+6*slot(si)+4+tt} offset:{SLW + k*8192 + h*4096}', 'v0') for k in range(4) for tt in range(2) for h in range(2)]
                s.weave(pend + ['s_nop 0'], rd[:12] + ['s_waitcnt lgkmcnt(8)'] + rd[12:], per=3); pend = []
                s.wait(lg='v0')
            else:
                s.weave(pend + ['s_nop 0'], reads(2*t, slot(si)), per=3); pend = []
                s.weave(mf(2*t), reads(2*t+1, slot(si)), start=1, per=2)
                m = mf(2*t+1)
                cut = len(m) if si == NS-1 else max(8, o['p1bar'] + 2)
                for it in m[:cut]: s.emit(it)
                pend = m[cut:]
            if si == NS-3: self.fast_test(s, 0)
            if si == NS-2: self.fast_test(s, 1)
        self.stamp(s, 'T1')
        for rt in range(3):
            d = 112 + 4*rt
            for tt in range(2):
                a = acc(tt, rt)
                s.i(f'v_cvt_pk_bf16_f32 v{d+2*tt}, v{a}, v{a+1}\nv_cvt_pk_bf16_f32 v{d+2*tt+1}, v{a+2}, v{a+3}')
        self.stamp(s, 'qk:cv')
        for rt in range(3):
            d = 112 + 4*rt
            s.i(f'v_permlane16_swap_b32 v{d}, v{d+2}\nv_permlane16_swap_b32 v{d+1}, v{d+3}')
        self.stamp(s, 'qk:sw')
        for rt in range(3): s.i(f'ds_write_b128 v15, {vr(112+4*rt,4)} offset:{rt*1024}', 'qw')
        self.stamp(s, 'qk:qw')
        qst = lambda: self.xstores(s, [f'buffer_store_dwordx4 {vr(112+4*rt,4)}, v1, {WS}, {sXP} offen offset:{rt*1024}' for rt in range(3)], 'qs')
        if not o['qslate']: qst()
        self.stamp(s, 'qk:qs')
        s.i('s_waitcnt lgkmcnt(0)\ns_barrier')
        self.stamp(s, 'b9')
        for u in range(4):
            for rt in range(3): s.i(f'ds_read_b128 {vr(self.Qreg(u,rt),4)}, v249 offset:{(u*3+rt)*1024}', f'q{u}')
        if o['qslate']: qst()
        mm = self.qk_mfmas(0); main = []
        for u in range(4): main += [{'lg': f'q{u}'}] + mm[6*u:6*u+6]
        s.weave(main, self.k_reads(1), start=8, per=1)
        self.stamp(s, 'qk:0')
        s.wait(vm='qs'); self.flag(s, 0, 'qf')
        self.stamp(s, 'qflag')
        for t in (1, 2):
            s.wait(lg=f'k{t}')
            mm = self.qk_mfmas(t)
            cut = self.ints('qb')[t-1]
            mx = self.max_ops(t-1); nx = min(12, max(0, cut - 2)*2)
            s.weave(mm[:cut], mx[:nx], start=min(2, cut-1), per=2)
            self.stamp(s, f'qk:a{t}')
            s.i('s_barrier')
            self.stamp(s, f'qk:b{t}')
            s.weave(mm[cut:], self.k_reads(t+1) + mx[nx:], per=2)
        self.stamp(s, 'b11')
        s.wait(lg='k3')
        self.qk_last(s, self.exp_setup(L_PA))
        self.stamp(s, 'qk:3')
        self.max_publish(s, M_MAXA)
        self.stamp(s, 'qk:pub')
        s.i('s_waitcnt lgkmcnt(0)\ns_barrier')
        self.stamp(s, 'bmaxA')
        self.exp_phase(s, M_MAXA, M_LA, [], {12: ['v_mov_b32 v252, 0', (f'ds_write_b32 v250, v252 offset:{M_FLG}', 'fz')]}, o['wdA'])
        self.stamp(s, 'expA')
        s.i(f'v_add_u32 v15, {L_PA}, v1')
        s.i('s_waitcnt lgkmcnt(0)\ns_barrier')
        self.stamp(s, 'bPA')
        PF = [40, 192]
        def p_reads(n, buf, tag): return [(f'ds_read_b128 {vr(PF[buf]+4*m,4)}, v15 offset:{n*6144 + m*1024}', tag) for m in range(6)]
        def vrd(k):
            return [(f'ds_read_b64_tr_b16 {vr(Vreg(k)+4*tt+2*h,2)}, v{7 + tt + 2*(VA[k][h] >> 16)} offset:{VA[k][h] & 0xffff}', f'vr{k}') for tt in range(2) for h in range(2)]
        def pv(n, buf, first):
            return [mfma(acc(tt, rt), Vreg(2*n+ks)+4*tt, PF[buf]+12*ks+4*rt, None if (first and ks == 0) else acc(tt, rt)) for ks in range(2) for tt in range(2) for rt in range(3)]
        def capped(items):
            out = []
            for x in items:
                out.append(lambda x=x: (s.i('s_waitcnt lgkmcnt(10)') if len(s.lg) - s.lg_done >= 14 else None, s.emit(x)))
            return out
        T = self.TMP
        for it in p_reads(0, 0, 'a0'): s.emit(it)
        def stats(dst_lse):
            st = []
            for rt in range(3):
                r = T + 4*rt
                st += [f'v_add_f32 v{r}, v{r}, v{r+1}', f'v_add_f32 v{r+2}, v{r+2}, v{r+3}', f'v_add_f32 v{r}, v{r}, v{r+2}',
                       f'v_rcp_f32 v{232+rt}, v{r}', f'v_log_f32 v{r}, v{r}']
            return st + [f'v_add_f32 v{dst_lse+rt}, v{T+4*rt}, v{self.MC+rt}' for rt in range(3)]
        vsched = {0: [4, 5, 6, 7], 1: [8, 9, 10, 11], 2: [12, 13, 14, 15]}
        for n in range(8):
            mm = pv(n, n & 1, n == 0)
            s.wait(lg=f'a{n}')
            if n >= 2: s.wait(lg=f'vr{2*n+1}')
            self.stamp(s, f'pva:{n}')
            fill = []
            if n + 1 < 8: fill += capped(p_reads(n+1, (n+1) & 1, f'a{n+1}'))
            fill += capped(sum([vrd(k) for k in vsched.get(n, [])], []))
            if n == o.get('bvu', 3): fill += [{'lg': 'vr15'}, 's_barrier']
            if n == o['clru'] and not o['clrB']:
                fill += [f'v_mov_b32 v{216+r}, -1' for r in range(4)]
                fill += [(f'buffer_store_dwordx4 v[216:219], v1, {WS}, s{TAB} offen offset:{rt*1024} sc1', 'clr') for rt in range(3)]
            if n == 5: fill += [(f'ds_read_b128 {vr(T+4*rt,4)}, v251 offset:{M_LA + rt*256}', 'la') for rt in range(3)]
            if n == 6: fill += [{'lg': 'la'}] + stats(228)[:10]
            if n == 7: fill += stats(228)[10:] + [f'v_min_u32 v{228+rt}, -2, v{228+rt}' for rt in range(3)]
            s.weave(mm, fill, per=2)
        self.stamp(s, 'PVA')
        if o['prioB']: s.i(f's_setprio {o["prioB"]+1}')
        s.i(f'v_add_u32 v15, {L_PB}, v1')
        for rt in range(3):
            for tt in range(2):
                a = acc(tt, rt); d = 216 + 4*rt + 2*tt
                for e in range(4): s.i(f'v_mul_f32 v{a+e}, v{a+e}, v{232+rt}')
                s.i(f'v_cvt_pk_bf16_f32 v{d}, v{a}, v{a+1}\nv_cvt_pk_bf16_f32 v{d+1}, v{a+2}, v{a+3}')
                s.i(f'v_min_u32 v{d}, -2, v{d}\nv_min_u32 v{d+1}, -2, v{d+1}')
        def posend():
            self.xstores(s, [f'buffer_store_dwordx4 {vr(216+4*n,4)}, v1, {WS}, {sXO} offen offset:{n*1024}' for n in range(3)] +
                         ['s_mov_b64 exec, 0xffff', f'buffer_store_dwordx4 v[228:231], v1, {WS}, {sXO} offen offset:3072', 's_mov_b64 exec, -1'], 'pos')
        if o['poearly']: posend()
        if o['prioB']: s.i('s_setprio 0')
        s.i('s_barrier')
        self.stamp(s, 'bPB')
        UL = [u for t in TORD for u in (2*t, 2*t+1)]
        for it in p_reads(UL[0], 0, 'c0'): s.emit(it)
        if not o['poearly']: posend()
        st = [(f'ds_read_b128 {vr(T+4*rt,4)}, v251 offset:{M_MAXB + rt*256}', 'sb') for rt in range(3)]
        st1 = [{'lg': 'sb'}]
        for rt in range(3):
            r = T + 4*rt
            st1 += [f'v_max3_f32 v{r}, v{r}, v{r+1}, v{r+2}', f'v_max_f32 v{r}, v{r}, v{r+3}', f'v_mul_f32 v{self.MC+rt}, {sC}, v{r}']
        st2 = [(f'ds_read_b128 {vr(T+4*rt,4)}, v251 offset:{M_LB + rt*256}', 'sc') for rt in range(3)]
        st3 = [{'lg': 'sc'}] + stats(self.MC)
        pol = [(f'buffer_load_dwordx4 v[228:231], v4, {WS}, {sXP} offen offset:3072 sc1', 'pol')] + \
              [(f'buffer_load_dwordx4 {vr(216+4*n,4)}, v1, {WS}, {sXP} offen offset:{n*1024} sc1', 'pol') for n in range(3)]
        for n, u in enumerate(UL):
            s.wait(lg=f'c{n}')
            self.stamp(s, f'pvb:{n}')
            mm = pv(u, n & 1, n == 0)
            fill = []
            if n == 3 and o['b1g'] < 12:
                for x in mm[:4]: s.i(x)
                mm = mm[4:]
                s.i('s_barrier')
            if n + 1 < 8: fill += p_reads(UL[n+1], (n+1) & 1, f'c{n+1}')
            if n == 0: fill += st
            if n == 1: fill += st1
            if n == 2 and not o['clrB']: fill += [{'vm': 'clr'}, lambda: self.flag(s, 1, 'cf', always_slow=True)]
            if n == 4: fill += st2
            if n == o['pk']: fill += pol
            if n == 6: fill += st3
            s.weave(mm, fill, per=2)
        self.stamp(s, 'PVB')
        chk = self.lab('pochk')
        s.i(f's_mov_b32 {sCNT}, 0\n{chk}:')
        s.i('s_waitcnt vmcnt(0)')
        s.i('v_max3_u32 v246, v216, v217, v218\nv_max3_u32 v247, v219, v220, v221')
        for n in (222, 226): s.i(f'v_max3_u32 v246, v246, v{n}, v{n+1}\nv_max3_u32 v247, v247, v{n+2}, v{n+3}')
        s.i(f'v_max3_u32 v246, v246, v230, v247\nv_cmp_eq_u32 vcc, -1, v246')
        for rt in range(3): s.i(f'v_sub_f32 v{240+rt}, v{self.MC+rt}, v{228+rt}\nv_sub_f32 v{243+rt}, v{228+rt}, v{self.MC+rt}')
        rl = self.lab('poreload')
        s.i(f's_cbranch_vccnz {rl}')
        self.cold += [f'{rl}:', f'    s_add_u32 {sCNT}, {sCNT}, 1', f'    s_cmp_gt_u32 {sCNT}, {SPIN_MAX}', '    s_cbranch_scc1 L_end'] + ['    ' + x[0] for x in pol] + [f'    s_branch {chk}']
        self.stamp(s, 'pogot')
        for n in range(6): s.i(f'v_exp_f32 v{240+n}, v{240+n}')
        for n in range(6): s.i(f'v_add_f32 v{240+n}, 1.0, v{240+n}')
        for n in range(6): s.i(f'v_rcp_f32 v{240+n}, v{240+n}')
        for rt in range(3): s.i(f'v_mul_f32 v{232+rt}, v{232+rt}, v{243+rt}')
        for rt in range(3):
            for tt in range(2):
                a = acc(tt, rt); d = 216 + 4*rt + 2*tt
                for h in range(2):
                    s.i(f'v_lshlrev_b32 v246, 16, v{d+h}\nv_and_b32 v247, 0xffff0000, v{d+h}')
                    s.i(f'v_mul_f32 v246, v246, v{240+rt}\nv_mul_f32 v247, v247, v{240+rt}')
                    s.i(f'v_fmac_f32 v246, v{a+2*h}, v{232+rt}\nv_fmac_f32 v247, v{a+2*h+1}, v{232+rt}')
                    s.i(f'v_cvt_pk_bf16_f32 v{d+h}, v246, v247')
            self.xstores(s, [f'buffer_store_dwordx4 {vr(216+4*rt,4)}, v1, {WS}, {sXP} offen offset:{rt*1024}'], 'os')
        self.stamp(s, 'T2')
        s.i(f'ds_write_b32 v250, v255 offset:{M_FLG}', 'fw')
        s.i(f's_lshl_b32 {sT2}, {sG}, 5\ns_add_u32 {sT2}, {sT2}, {sW}\ns_lshl_b32 {sT2}, {sT2}, 12\ns_add_u32 {sT2}, {sT2}, {WS_X}\ns_mul_i32 {sRING}, {sW}, 3072')
        for t in range(8):
            self.ord_t(s, f's{TAB+t}', ORDS[o['woord']][t])
            s.i(f's_lshl_b32 s{TAB+t}, s{TAB+t}, 14\ns_add_u32 s{TAB+t}, s{TAB+t}, {sT2}')
        s.i(f's_lshl2_add_u32 {sT2}, {sG}, {sW}\ns_lshl_b32 {sT2}, {sT2}, 7\ns_add_u32 {sT2}, {sT2}, {WS_OFL}')
        s.wait(vm='os')
        self.stamp(s, 'o:ack')
        self.flag(s, 'o', 'of')
        self.lds_wait(s, M_FLG, 0)
        self.stamp(s, 'o:done')
        self.poll(s, o['opoll'], sT2, 0, 8, 1)
        self.stamp(s, 'oflags')
        def o_dma(t):
            s.i(f's_add_u32 m0, {sRING}, {L_O + t*12288}')
            for rt in range(3): s.i(f'buffer_load_dwordx4 v1, {WS}, s{TAB+t} offen offset:{rt*1024} sc1 lds', f'o{t}')
        for t in range(4): o_dma(t)
        for i, t in enumerate(self.OBARS):
            last = (self.OBARS + [8])[i+1] - 1
            s.wait(vm=f'o{last}')
            s.i('s_barrier')
            if i == 0: o_dma(4); o_dma(5)
            if i == 1: o_dma(6); o_dma(7)
            if i == 2:
                s.i(f's_lshl2_add_u32 {sT0}, {sB}, {sW}\ns_lshl3_add_u32 {sT0}, {sT0}, {sJ}\ns_lshl_b32 {sT2}, {sT0}, 7')
                self.poll(s, 's', sT2, 4, 1, '0x01010101')
        self.stamp(s, 'odone')
        if self.diag: s.i('s_barrier')
        self.dump_stamps(s)
        s.i('s_endpgm')

    OBARS = [0, 1, 3, 5]

    def roleB(self, s):
        o = self.opt
        self.k3alt = False
        sK1, sK2, sXS, sWS = 's52', 's53', 's54', 's55'
        self.srds(s, [(4, 384*2048), (16, 8<<20)])
        s.i(f'v_lshrrev_b32 v4, 4, v0\ns_lshl_b32 {sT0}, {sW}, 2\nv_add_u32 v5, {sT0}, v4')
        s.i(f'v_xor_b32 v6, v5, v0\nv_and_b32 v6, 15, v6\nv_lshlrev_b32 v6, 4, v6\nv_lshl_or_b32 v2, v5, 11, v6')
        s.i(f'v_lshlrev_b32 v7, 1, v5\nv_xor_b32 v7, v7, v0\nv_and_b32 v7, 15, v7\nv_lshlrev_b32 v7, 4, v7\nv_add_u32 v8, {sT0}, v5\nv_lshl_or_b32 v3, v8, 13, v7')
        s.i(f's_lshl_b32 s3, {sW}, 10\ns_mul_i32 {sXS}, {sB}, {48*2048}\ns_lshl3_add_u32 {sWS}, {sHKV}, {sJ}\ns_lshl_b32 {sWS}, {sWS}, 8')
        s.i(f's_mov_b32 {sK1}, 0x8000\ns_mov_b32 {sK2}, {0x40000 - 0x8000}')
        VT = {0: 's4', 1: 's5', 2: 's6', 3: 's16'}
        def issue(si, first=False):
            kind, t = self.steps[si]; base = SL[slot(si)]; tag = f's{si}'
            if kind == 'w':
                self.ord_t(s, sT0, ORDS[o['wqord']][t])
                if o.get('jrot', 1): s.i(f's_add_u32 {sT0}, {sT0}, {sJ}\ns_and_b32 {sT0}, {sT0}, 7')
                s.i(f's_lshl_b32 {sT2}, {sT0}, 8\ns_add_u32 {sT2}, {sT2}, {sXS}\ns_lshl_b32 {sT3}, {sT0}, 20\ns_add_u32 {sT3}, {sT3}, {sWS}')
                s.i(f's_add_u32 m0, s3, {base}' if base else f's_mov_b32 m0, s3')
                if first: s.i('s_waitcnt lgkmcnt(0)')
                for rt in range(3):
                    s.i(f'buffer_load_dwordx4 v2, {X}, {sT2} offen lds', tag)
                    s.i(f's_addk_i32 m0, 4096')
                    if rt < 2: s.i(f's_add_u32 {sT2}, {sT2}, {sK1}')
                for n in range(8):
                    s.i(f'buffer_load_dwordx4 v3, {WQ}, {sT3} offen lds', tag)
                    if n < 7: s.i(f's_addk_i32 m0, 4096\ns_add_u32 {sT3}, {sT3}, {sK2 if n & 1 else sK1}')
            else:
                s.i(f's_add_u32 m0, s3, {base + SLW}\ns_mov_b32 {sT3}, {VT[t] if t else f"s{TAB}"}')
                for n in range(8):
                    s.i(f'buffer_load_dwordx4 v247, {K}, {sT3} offen lds' if kind == 'k' else f'buffer_load_dwordx4 v248, {V}, {sT3} offen lds', tag)
                    if n < 7: s.i(f's_addk_i32 m0, 4096\ns_addk_i32 {sT3}, 4096')
        issue(0, True); issue(1)
        s.i('L_first_end:')
        self.srds(s, [(8, 8<<20), (12, 8<<20), (20, 8<<20), (24, 384*2048), (28, 256<<20)])
        s.i('v_lshl_or_b32 v247, v5, 8, v6\nv_lshl_or_b32 v248, v5, 8, v7')
        self.kv_table(s, {t: f's{TAB+t}' for t in range(4)})
        s.i(f's_mov_b32 {sC}, {CEXP:#x}')
        s.i('v_mov_b32 v10, v2')
        self.k_addr(s)
        s.i('v_mov_b32 v249, v2\nv_mov_b32 v2, v10')
        self.misc_addr(s)
        self.flag_setup(s)
        sGOT, sQM, sQX = 's19', 's33', 's32'
        qld = [f's_mul_i32 {sT0}, {sW}, 3072', f's_add_u32 m0, {sT0}, {L_Q2}', f's_mov_b32 {sGOT}, 1'] + \
              [f'buffer_load_dwordx4 v1, {WS}, {sQX} offen offset:{rt*1024} sc1 lds' for rt in range(3)]
        def attempt():
            skip = self.lab('noq')
            s.i(f's_waitcnt lgkmcnt(0)\ns_cmp_lg_u32 {sGOT}, 0\ns_cbranch_scc1 {skip}\ns_and_b32 s{POLL}, s{POLL}, {sQM}\ns_cbranch_scc0 {skip}')
            for x in qld: self.raw(s, x)
            s.i(f'{skip}:')
        for si, (kind, t) in enumerate(self.steps):
            s.wait(vm=f's{si}')
            s.i('s_waitcnt lgkmcnt(0)') if si and self.steps[si-1][0] == 'k' else None
            s.i('s_barrier')
            if si == 0: self.stamp(s, 'b0')
            if si == NS: self.stamp(s, 'b9')
            if o['k2late'] and si == NS: issue(NS + 1)
            if si + 2 < NS + 3 and not (o['k2late'] and si == NS - 1): issue(si + 2)
            if si == NS and self.fast and o['pre']:
                s.i('v_lshlrev_b32 v252, 7, v0\ns_mov_b64 exec, 0x3ffffff')
                s.i(f'buffer_load_dword v244, v252, {WS}, {sQX} offen sc1', 'pre')
                s.i('s_mov_b64 exec, -1')
            if si == NS + 1:
                for k in range(4, 4 + o['vpre']):
                    for it in self.v_dma(k, VT, 'v2', 'v'): s.emit(it)
            if self.fast and o['spre'] and si < 6:
                if si == 0:
                    self.xb_off(s, sT0, False)
                    s.i(f's_add_u32 s64, s28, {sT0}\ns_addc_u32 s65, s29, 0')
                for ln in range(26*si//6, 26*(si+1)//6):
                    self.raw(s, f's_load_dwordx2 s[66:67], s[64:65], {ln*128 + 60}')
            if si == NS-3:
                for tt in range(4): s.i(f's_mov_b32 {VT[tt]}, s{TAB+tt}')
                s.i('v_mov_b32 v2, v248')
            if si == NS-4: self.fast_test(s, 0)
            if si == NS-3: self.fast_test(s, 1)
            if kind == 'k':
                for it in self.k_reads(t, 'v249'): s.emit(it)
            if si == NS-2 and not o.get('nodbg'):
                s.i(f's_lshl_b32 {sT0}, {sB}, 5\ns_add_u32 s34, s32, {sT0}\ns_addc_u32 s35, s33, 0\ns_load_dwordx8 s[{POLL}:{POLL+7}], s[34:35], 0')
            if si == NS-1 and not o.get('nodbg'):
                ok = self.lab('dbgok')
                s.i('s_waitcnt lgkmcnt(0)')
                self.and8(s)
                s.i(f's_and_b32 s{POLL}, s{POLL}, 0x80808080\ns_cmp_eq_u32 s{POLL}, 0x80808080\ns_cbranch_scc1 {ok}')
                s.i(f's_mov_b32 s60, s32\ns_mov_b32 s61, s33\ns_mov_b32 s62, 256\ns_mov_b32 s63, 0x20000\ns_lshl_b32 {sT1}, {sB}, 5\nv_and_b32 v253, 31, v0')
                lp = self.spin_head(s, 'dbg')
                self.raw(s, f'buffer_load_ubyte v252, v253, s[60:63], {sT1} offen sc1')
                self.raw(s, 's_waitcnt vmcnt(0)')
                s.i(f'v_cmp_eq_u32 vcc, 0, v252\ns_nop 4\ns_cbranch_vccnz {lp}')
                s.i(f'{ok}:')
            if si == NS-2 and o['touch']:
                s.i(f's_xor_b32 {sT0}, {sL}, 1\ns_lshl_b32 {sT0}, {sT0}, 7\ns_add_u32 s34, s28, {sT0}\ns_addc_u32 s35, s29, 0\ns_load_dwordx2 s[0:1], s[34:35], 60')
                s.i(f's_andn2_b32 {sT0}, s69, 127\ns_add_u32 s34, s28, {sT0}\ns_addc_u32 s35, s29, 0\ns_load_dwordx2 s[18:19], s[34:35], 60')
                if o.get('nodbg'): s.i('s_waitcnt lgkmcnt(0)')
            if si == NS-1:
                s.i(f's_xor_b32 s17, {sL}, 1\ns_lshl_b32 s17, s17, 7\ns_add_u32 s34, s28, s17\ns_addc_u32 s35, s29, 0')
                s.i(f's_lshl_b32 {sQM}, {sW}, 3\ns_lshl_b32 {sQM}, 1, {sQM}\ns_mov_b32 {sGOT}, 0')
                self.xb_off(s, sQX, False)
                for r in range(4): s.i(f'v_mov_b32 v{240+r}, -1')
                s.i(f'v_lshrrev_b32 v246, 1, v0\nv_lshlrev_b32 v246, 11, v246\nv_and_b32 v245, 1, v0\nv_lshl_or_b32 v246, v245, 7, v246')
                s.i(f's_lshl_b32 {sT2}, {sHKV}, 21\ns_lshl_b32 {sT0}, {sW}, 16\ns_add_u32 {sT2}, {sT2}, {sT0}\ns_lshl_b32 {sT0}, {sJ}, 8\ns_add_u32 {sT2}, {sT2}, {sT0}')
                for n in range(2):
                    self.ord_t(s, f's{n}', (n, 0))
                    s.i(f's_lshl_b32 s{n}, s{n}, 18\ns_add_u32 s{n}, s{n}, {sT2}')
                self.stream_setup(s, 11, 15360)
                s.i(f's_lshl_b32 {sT2}, {sHKV}, 21\ns_and_b32 {sT0}, {sW}, 1\ns_lshl_b32 {sT0}, {sT0}, 17\ns_add_u32 {sT2}, {sT2}, {sT0}')
                s.i(f's_lshl_b32 {sT0}, {sJ}, 8\ns_add_u32 {sT2}, {sT2}, {sT0}\ns_lshr_b32 {sT0}, {sW}, 1\ns_lshl_b32 {sT0}, {sT0}, 7\ns_add_u32 {sT2}, {sT2}, {sT0}')
                for tt in range(8):
                    self.ord_t(s, f's{TAB+tt}', ORDS[o['woord']][tt])
                    s.i(f's_lshl_b32 s{TAB+tt}, s{TAB+tt}, 18\ns_add_u32 s{TAB+tt}, s{TAB+tt}, {sT2}')
        wo_off = lambda k: f's{TAB+(k>>1)}' if k % 2 == 0 else (f's{TAB+(k>>1)}', 32*2048)
        self.stamp(s, 'b11')
        nv = 4 + o['vpre']
        def vgo(n):
            nonlocal nv
            for k in range(nv, nv + n):
                for it in self.v_dma(k, VT, 'v2', 'v'): s.emit(it)
            nv += n
        vgo(o['vq'])
        self.poll(s, o['qpoll'], 's17', 0, 1, sQM, sQM)
        for x in qld: s.i(x, 'q2')
        self.stamp(s, 'qseen')
        vgo(o['vmid'])
        assert o['vpre'] <= 6 and nv <= 14
        s.i(f'v_add_u32 v249, {L_Q2}, v1')
        s.wait(vm='q2')
        self.stamp(s, 'tq')
        s.i('s_waitcnt lgkmcnt(0)\ns_barrier')
        self.stamp(s, 'bmaxA')
        def poison():
            self.xstores(s, [f'buffer_store_dwordx4 v[240:243], v1, {WS}, {sQX} offen offset:{n*1024}' for n in range(3)] +
                         ['s_mov_b64 exec, 0xffff', f'buffer_store_dwordx4 v[240:243], v1, {WS}, {sQX} offen offset:3072', 's_mov_b64 exec, -1'], 'clr')
        for u in range(4):
            for rt in range(3): s.i(f'ds_read_b128 {vr(self.Qreg(u,rt),4)}, v249 offset:{(u*3+rt)*1024}', f'q{u}')
        vgo(min(o['vnext'], 16 - nv))
        rest = [self.v_dma(k, VT, 'v2', 'v')[3*h:3*h+3] for k in range(nv, 16) for h in range(2)]
        vb = {o['vb0'] + n*o['vbs']: x for n, x in enumerate(rest)}
        pfm = self.ints('pfm')
        cnt = [0]
        def M(x):
            def f():
                s.i(x);
                if cnt[0] == o['poisonm']: poison()
                if cnt[0] == o['cfm']:
                    s.wait(vm='clr'); self.flag(s, 2, 'cf', always_slow=True)
                if o['pf'] and cnt[0] in pfm:
                    n = pfm.index(cnt[0])
                    s.i(f'buffer_load_dword v{252+n}, v246, {WO}, s{n} offen', 'pf')
                for it in vb.get(cnt[0], []): s.emit(it)
                cnt[0] += 1
            return f
        mm = [M(x) for x in self.qk_mfmas(0)]
        for u in range(4):
            s.wait(lg=f'q{u}')
            for x in mm[6*u:6*u+6]: s.emit(x)
        for t in (1, 2): s.weave([M(x) for x in self.qk_mfmas(t)], self.max_ops(t-1), start=3)
        self.qk_last(s, self.exp_setup(L_PB), M)
        self.max_publish(s, M_MAXB)
        self.stamp(s, 'QKB')
        s.wait(vm='v')
        s.i('s_waitcnt lgkmcnt(0)\ns_barrier')
        if o['prioB']: s.i(f's_setprio {o["prioB"]}')
        RW, NP = 3, 10
        assert o['v1g'] <= max(5, o['wdB'])
        hooks = {('pre', o['v1g']): ['s_barrier']}
        wog = self.ints('wog')
        for k in range(3):
            assert wog[k] >= o['v1g']
            hooks.setdefault(wog[k], []).extend(self.w_dma(WO, k, wo_off(k), f'w{k}'))
        wp = self.ints('wpark')
        for k, g in enumerate(wp):
            assert g >= [0, 0, 5, 5, 8, 8, 11, 11][k] and g > wog[2]
            hooks.setdefault(g, []).extend([{'vm': f'w{k}'}] + self.w_reads(PARK[k], k % RW, f'wr{k}'))
        for k, g in enumerate(wp):
            hooks[g+1] = [{'lg': f'wr{k}'}] + self.w_dma(WO, k % RW, wo_off(k+RW), f'w{k+RW}') + hooks.get(g+1, [])
        hooks[('pre', 6)] = [f's_load_dword s{POLL}, s[34:35], 8 glc']
        def chk():
            lp, ok = self.lab('cfpoll'), self.lab('cfok')
            s.i(f's_waitcnt lgkmcnt(0)\ns_mov_b32 {sCNT}, 0\ns_cmp_eq_u32 s{POLL}, 0x01010101\ns_cbranch_scc0 {lp}\n{ok}:')
            self.cold += [f'{lp}:', f'    s_add_u32 {sCNT}, {sCNT}, 1', f'    s_cmp_gt_u32 {sCNT}, {SPIN_MAX}', '    s_cbranch_scc1 L_end',
                          f'    s_load_dword s{POLL}, s[34:35], 8 glc', '    s_waitcnt lgkmcnt(0)', f'    s_cmp_eq_u32 s{POLL}, 0x01010101', f'    s_cbranch_scc0 {lp}', f'    s_branch {ok}']
            self.stamp(s, 'exp:b1')
            if o['b1g'] < 12: s.i('s_barrier')
        hooks[('pre', min(11, o['b1g']))] = [chk]
        assert o['wdB'] == 2 or (o['b1g'] == 12 and not wp)
        self.exp_phase(s, M_MAXB, M_LB, [], hooks, o['wdB'])
        if o['prioB']: s.i('s_setprio 0')
        self.stamp(s, 'expB')
        s.i('s_waitcnt lgkmcnt(0)')
        for it in hooks.get(13, []): s.emit(it)
        s.i('s_barrier')
        def clr():
            for r in range(4): s.i(f'v_mov_b32 v{240+r}, -1')
            s.i(f's_mul_i32 {sT1}, {sL}, 12288\ns_mul_i32 {sT0}, {sW}, 3072\ns_add_u32 {sT1}, {sT1}, {sT0}\ns_add_u32 {sT1}, {sT1}, {WS_S2}')
            s.i(f's_cmp_eq_u32 {sW}, {sHKV}\ns_cselect_b32 {sT1}, 0x10000000, {sT1}')
            for rt in range(3): s.i(f'buffer_store_dwordx4 v[240:243], v1, {WS}, {sT1} offen offset:{rt*1024} sc1', 'clr2')
        if o['clrB'] == 1: clr()
        for it in hooks.get(14, []): s.emit(it)
        PK = lambda k: PARK[k % NP]
        s.i(f's_and_b32 {sT0}, {sW}, 1\ns_mul_i32 {sT0}, {sT0}, 6144\ns_add_u32 {sT0}, {sT0}, {L_O}\nv_add_u32 v11, {sT0}, v1\nv_add_u32 v12, 49152, v11')
        s.i(f'v_add_u32 v14, {sRING}, v1\ns_xor_b32 {sT0}, {sW}, 1\ns_mul_i32 {sT0}, {sT0}, 12288')
        if L_V: s.i(f's_add_u32 {sT0}, {sT0}, {L_V}')
        s.i(f'v_add_u32 v13, {sT0}, v1')
        NP0 = o['np0']
        for k in range(len(wp), NP0):
            s.wait(vm=f'w{k}')
            self.stamp(s, f'pvb:w{k}')
            for it in self.w_reads(PK(k), k % RW, f'wr{k}'): s.emit(it)
            s.wait(lg=f'wr{k}')
            for it in self.w_dma(WO, k % RW, wo_off(k+RW), f'w{k+RW}'): s.emit(it)
            if o['clrB'] >= 2 and k == o['clrB'] - 2: clr()
            if o['clrB'] and k == min(NP0 - 1, o['clrB'] + 2):
                s.wait(vm='clr2'); self.flag(s, 1, 'cf', always_slow=True)
        self.stamp(s, 'parked')
        OF = [224, 236]
        def o_reads(k): return [(f'ds_read_b128 {vr(OF[k&1]+4*rt,4)}, v{11+(k>>3)} offset:{((k>>1)&3)*12288 + (k&1)*3072 + rt*1024}', f'o{k}') for rt in range(3)]
        s.i('s_barrier')
        self.stamp(s, 'bO0')
        for it in o_reads(0): s.emit(it)
        late = dict(zip(self.ints('late') if 'late' in o else {10: [1, 2, 3, 7, 8, 9], 9: [0, 1, 2, 6, 7, 8, 11], 8: [0, 1, 2, 5, 6, 7, 10, 11], 7: [0, 1, 2, 5, 6, 7, 10, 11, 12]}[NP0], range(NP0, 16)))
        assert all(k >= kk - NP + 1 and k < kk for k, kk in late.items()) and len(late) == 16 - NP0
        for k in range(16):
            s.wait(lg=f'o{k}')
            if k % 2 == 0: self.stamp(s, f'p3:{k}')
            if k >= NP0: s.wait(lg=f'wr{k}')
            mm = self.g_mfmas(PK(k), OF[k&1], k == 0, (2, 3, 0, 1) if k == 15 else (0, 1, 2, 3))
            fill = []
            bar = k + 1 < 16 and (k+1) % 2 == 0 and (k+1)//2 in self.OBARS
            if k + 1 < 16 and not bar: fill += o_reads(k+1)
            if k - 1 in late and late[k-1] + RW < 16:
                kk = late[k-1]
                fill += [{'lg': f'wr{kk}'}] + self.w_dma(WO, kk % RW, wo_off(kk+RW), f'w{kk+RW}')
            if k in late:
                kk = late[k]
                fill += [{'vm': f'w{kk}'}] + self.w_reads(PK(kk), kk % RW, f'wr{kk}')
            if bar:
                s.weave(mm[:5], [], per=2)
                s.i('s_barrier')
                s.weave(mm[5:], o_reads(k+1) + fill, per=3)
            else:
                s.weave(mm, fill, per=2)
        self.stamp(s, 'P3')
        for n in range(6): s.i(f'ds_write_b128 v14, {vr(40+4*n,4)} offset:{n*1024}', 'pw')
        s.i('s_waitcnt lgkmcnt(0)\ns_barrier')
        for n in range(6): s.i(f'ds_read_b128 {vr(64+4*n,4)}, v13 offset:{n*1024}', f'pr{n}')
        s.i(f's_cmp_eq_u32 {sW}, {sHKV}\ns_cbranch_scc1 L_recv')
        r = s.fork('B')
        s.i(f's_lshl2_add_u32 {sT1}, {sB}, {sW}\ns_lshl3_add_u32 {sT1}, {sT1}, {sJ}\ns_mul_i32 {sT1}, {sT1}, 12288\ns_mul_i32 {sT2}, {sHKV}, 3072\ns_add_u32 {sT1}, {sT1}, {sT2}\ns_add_u32 {sT1}, {sT1}, {WS_S2}')
        for n in range(6):
            s.wait(lg=f'pr{n}')
            a = 16 + 4*n; d = 88 + 4*(n % 3) + 2*(n//3)
            for e in range(4): s.i(f'v_add_f32 v{a+e}, v{a+e}, v{64+4*n+e}')
            s.i(f'v_cvt_pk_bf16_f32 v{d}, v{a}, v{a+1}\nv_cvt_pk_bf16_f32 v{d+1}, v{a+2}, v{a+3}')
            s.i(f'v_min_u32 v{d}, -2, v{d}\nv_min_u32 v{d+1}, -2, v{d+1}')
            if n >= 3: s.i(f'buffer_store_dwordx4 {vr(88+4*(n-3),4)}, v1, {WS}, {sT1} offen offset:{(n-3)*1024} sc1', 's2')
        saved = list(self.stamps['B'])
        self.stamp(s, 'sent'); self.stamp(s, 'got'); self.stamp(s, 'end')
        self.dump_stamps(s)
        s.i('s_endpgm')
        self.stamps['B'] = saved
        r.i('L_recv:')
        r.i(f's_mul_i32 {sT1}, {sL}, 12288\ns_add_u32 {sT1}, {sT1}, {WS_S2}')
        for n in range(1, 4):
            r.i(f's_add_u32 {sT0}, {sHKV}, {n}\ns_and_b32 {sT0}, {sT0}, 3\ns_mul_i32 {sT0}, {sT0}, 3072\ns_add_u32 s{TAB+n}, {sT0}, {sT1}')
        for n in range(6):
            r.wait(lg=f'pr{n}')
            for e in range(4): r.i(f'v_add_f32 v{16+4*n+e}, v{16+4*n+e}, v{64+4*n+e}')
        self.stamp(r, 'sent')
        r.i('v_and_b32 v2, 15, v0\nv_lshlrev_b32 v2, 11, v2\nv_bfe_u32 v3, v0, 4, 1\nv_lshl_or_b32 v2, v3, 5, v2\nv_lshrrev_b32 v3, 5, v0\nv_lshl_or_b32 v2, v3, 4, v2')
        r.i(f's_mul_i32 s{TAB+4}, {sB}, {48*2048}\ns_lshl_b32 {sT0}, {sJ}, 8\ns_add_u32 s{TAB+4}, s{TAB+4}, {sT0}\ns_lshl_b32 {sT0}, {sHKV}, 6\ns_add_u32 s{TAB+4}, s{TAB+4}, {sT0}')
        r.i(f's_add_u32 s{TAB+5}, s{TAB+4}, {16*2048}\ns_add_u32 s{TAB+6}, s{TAB+4}, {32*2048}')
        lp = self.spin_head(r, 's2')
        for n in range(3):
            for rt in range(3): r.i(f'buffer_load_dwordx4 {vr(64+12*n+4*rt,4)}, v1, {WS}, s{TAB+1+n} offen offset:{rt*1024} sc1', 'in')
        r.i('s_waitcnt vmcnt(0)')
        r.i('v_max3_u32 v4, v64, v65, v66\nv_max3_u32 v5, v67, v68, v69')
        for n in range(70, 100, 4):
            r.i(f'v_max3_u32 v4, v4, v{n}, v{n+1}')
            if n + 3 < 100: r.i(f'v_max3_u32 v5, v5, v{n+2}, v{n+3}')
        r.i(f'v_max_u32 v4, v4, v5\nv_cmp_eq_u32 vcc, -1, v4\ns_nop 4\ns_cbranch_vccnz {lp}')
        self.stamp(r, 'got')
        for rt in range(3):
            for n in range(3):
                for tt in range(2):
                    a = acc(tt, rt); d = 64 + 12*n + 4*rt + 2*tt
                    for h in range(2):
                        r.i(f'v_lshlrev_b32 v4, 16, v{d+h}\nv_and_b32 v5, 0xffff0000, v{d+h}')
                        r.i(f'v_add_f32 v{a+2*h}, v{a+2*h}, v4\nv_add_f32 v{a+2*h+1}, v{a+2*h+1}, v5')
            oo = 100 + 4*rt
            for tt in range(2):
                a = acc(tt, rt)
                r.i(f'v_cvt_pk_bf16_f32 v{oo+2*tt}, v{a}, v{a+1}\nv_cvt_pk_bf16_f32 v{oo+2*tt+1}, v{a+2}, v{a+3}')
            r.i(f'v_permlane16_swap_b32 v{oo}, v{oo+2}\nv_permlane16_swap_b32 v{oo+1}, v{oo+3}')
            r.i(f'buffer_store_dwordx4 {vr(oo,4)}, v2, {OUT}, s{TAB+4+rt} offen', 'out')
        if self.diag: r.i('s_waitcnt vmcnt(0)')
        self.stamp(r, 'end')
        self.dump_stamps(r)
        if self.opt.get('amp'):
            r.i('s_waitcnt vmcnt(0) lgkmcnt(0)\ns_memrealtime s[74:75]\ns_sub_u32 s72, s72, s70\ns_min_u32 s72, s72, 10000\ns_mul_i32 s72, s72, 8\ns_waitcnt lgkmcnt(0)')
            r.i('L_amp:\ns_memrealtime s[76:77]\ns_waitcnt lgkmcnt(0)\ns_sub_u32 s76, s76, s74\ns_cmp_lt_u32 s76, s72\ns_cbranch_scc1 L_amp')
        r.i('L_end:\ns_endpgm')
        return r

    def build(self):
        p = self.prologue()
        a = p.fork('A'); b = p.fork('B')
        r = self.roleB(b)
        self.roleA(a)
        nb = lambda *ss: sum(1 for s in ss for x in s.out if x.op == 's_barrier')
        assert nb(a) + (0 if self.diag else 1) == nb(b), (nb(a), nb(b))
        o = [HDR, '; @launch grid=(256,1,1) block=(512,1,1) lds=163840',
             '.amdgcn_target "amdgcn-amd-amdhsa--gfx950"', '.text', f'.globl {NAME}', '.p2align 8', f'.type {NAME},@function', f'{NAME}:',
             p.text(), b.text(), r.text(), a.text(), '\n'.join(self.cold), 'L_codeend:', '    s_endpgm',
             f'''.section .rodata,"a"
.p2align 6
.amdhsa_kernel {NAME}
  .amdhsa_next_free_vgpr 256
  .amdhsa_next_free_sgpr 102
  .amdhsa_accum_offset 256
  .amdhsa_group_segment_fixed_size 0
  .amdhsa_kernarg_size 64
  .amdhsa_user_sgpr_count 2
  .amdhsa_user_sgpr_kernarg_segment_ptr 1
  .amdhsa_system_sgpr_workgroup_id_x 1
.end_amdhsa_kernel''']
        self.nops = (a.nops, b.nops, r.nops)
        return '\n'.join(o) + '\n'

if __name__ == '__main__':
    opts = dict(kv.split('=') for kv in sys.argv[1:] if '=' in kv)
    opts = {k: (int(v) if v.lstrip('-').isdigit() else v) for k, v in opts.items()}
    g = Gen(diag='diag' in sys.argv, fast='slow' not in sys.argv, **opts)
    t = g.build()
    out = [a for a in sys.argv[1:] if a.endswith('.s')]
    open(out[0] if out else 'k.s', 'w').write(t)
    print('nops', g.nops, 'lines', t.count('\n'), g.stamps)
```

```python
import math, struct, sys
from asmlib import Stream, Ins

NAME = 'standalone__gqa_block_cached__near_ridge_kernel'
HDR = open('standalone__gqa_block_cached__near_ridge.s.ref').read().split('; Override launch')[0].rstrip()

WS_FLAGS, WS_OFL, WS_X, WS_S2, WS_STAMP = 0, 0x8000, 0x10000, 0x800000, 0x1000000
SL = [0, 45056, 90112]; SLW = 12288
L_Q = 135168; L_Q2 = 90112
L_V = 0; L_MISC = 49152; L_SPARE = 53248
L_PB = 65536; L_PA = 114688
L_O = 65536
M_MAXA, M_MAXB, M_LA, M_LB, M_FLG = 0, 768, 1536, 2304, 3072
X, K, V, WQ, WO, OUT, WS = 's[4:7]', 's[8:11]', 's[12:15]', 's[16:19]', 's[20:23]', 's[24:27]', 's[28:31]'
sW, sHKV, sBH, sBL, sJ, sB, sG, sL = 's36', 's37', 's38', 's39', 's40', 's41', 's42', 's43'
sRING, sC, sCNT, sFAST = 's44', 's45', 's46', 's47'
TAB = 48
sT0, sT1, sT2, sT3 = 's56', 's57', 's58', 's59'
POLL = 60
sFLG = 's[68:69]'
STAMP0 = 70
SPIN_MAX = 1 << 20
CEXP = struct.unpack('<I', struct.pack('<f', math.log2(math.e) / math.sqrt(128)))[0]

def vr(a, n): return f'v[{a}:{a+n-1}]'
def mfma(d, a, b, c=None):
    return f'v_mfma_f32_16x16x32_bf16 {vr(d,4)}, {vr(a,4)}, {vr(b,4)}, {vr(c,4) if c is not None else 0}'
ACC = 16
def acc(t, rt): return ACC + (t*3 + rt)*4
PARK = [160, 176, 96, 112, 64, 80, 128, 144, 192, 208]
ORD_A = [(0, 0), (0, 1), (0, 2), (0, 3), (1, 0), (1, 1), (1, 2), (1, 3)]
ORD_B = [(0, 0), (1, 0), (0, 1), (0, 2), (0, 3), (1, 1), (1, 2), (1, 3)]
ORD_C = [(0, 0), (0, 1), (1, 0), (0, 2), (0, 3), (1, 1), (1, 2), (1, 3)]
ORDS = dict(A=ORD_A, B=ORD_B, C=ORD_C)

DEFAULTS = dict(wqord='A', woord='B', p1bar=12, vmid=0, vb0=24, vbs=3, cfm=90, poisonm=76, clrB=1,
                np0=10, pk=4, opoll='v', prioB=1, slowflag=0, touch=1, k1early=0,
                v1g=2, v2g=5, v2m=6, poearly=1, pf='6', wog='14,14,14', wdA=7, wdB=6, wb=0, outsc='')
NS = 8
slot = lambda si: si % 3
TORD = (2, 1, 3, 0)
VA = [(k*8192, k*8192 + 4096) for k in range(6)] + [(53248 + k*8192, 57344 + k*8192) for k in range(4)] + [(102400, 106496), (86016, 110592)] + \
     [(53248 + k*8192, 57344 + k*8192) for k in range(3)] + [(114688, 118784)]
def Vreg(k): return 64 + 8*k

class Gen:
    def __init__(self, diag=False, fast=True, **opt):
        self.diag = diag; self.fast = fast
        self.opt = dict(DEFAULTS); self.opt.update(opt)
        self.nlab = 0
        self.cold = []
        self.stamps = {'A': [], 'B': [], 'P': []}
        self.steps = [('w', t) for t in range(8)] + [('k', t) for t in range(4)]

    def ints(self, k): return [int(x) for x in str(self.opt[k]).split(',') if x != '']

    def lab(self, p):
        self.nlab += 1
        return f'L_{p}_{self.nlab}'

    def raw(self, s, text): s.out.append(Ins(text))

    def stamp(self, s, name):
        amp = self.opt.get('amp')
        if amp and s.name == 'B' and name == amp: s.i('s_memrealtime s[72:73]')
        if not self.diag: return
        foc = self.opt.get('focus')
        if ':' in name:
            if name.split(':')[0] != foc: return
        elif foc and name not in ('entry', 'sent', 'got', 'end') and name not in self.opt.get('keep', '').split(','): return
        l = self.stamps[s.name]; n = len(l); l.append(name)
        assert n < 16, l
        s.i(f'{"s_memtime" if (name.startswith("cyc") or self.opt.get("cyc")) else "s_memrealtime"} s[{STAMP0+2*n}:{STAMP0+2*n+1}]')

    def dump_stamps(self, s):
        if not self.diag: return
        n = len(self.stamps[s.name])
        s.i('s_waitcnt vmcnt(0) lgkmcnt(0)')
        s.i(f's_lshl_b32 {sT0}, s2, 3\ns_add_u32 {sT0}, {sT0}, {sW}')
        if s.name == 'B': s.i(f's_add_u32 {sT0}, {sT0}, 4')
        s.i(f's_lshl_b32 {sT0}, {sT0}, 7\ns_add_u32 {sT0}, {sT0}, {WS_STAMP}\nv_mov_b32 v1, 0')
        for k in range(n):
            s.i(f'v_mov_b32 v2, s{STAMP0+2*k}\nbuffer_store_dword v2, v1, {WS}, {sT0} offen offset:{4*k}\ns_waitcnt vmcnt(0)')

    def spin_head(self, s, p):
        lp = self.lab(p)
        s.i(f's_mov_b32 {sCNT}, 0\n{lp}:')
        s.i(f's_add_u32 {sCNT}, {sCNT}, 1\ns_cmp_gt_u32 {sCNT}, {SPIN_MAX}\ns_cbranch_scc1 L_end')
        return lp

    def and8(self, s):
        s.i(f's_and_b64 s[{POLL}:{POLL+1}], s[{POLL}:{POLL+1}], s[{POLL+2}:{POLL+3}]')
        s.i(f's_and_b64 s[{POLL+4}:{POLL+5}], s[{POLL+4}:{POLL+5}], s[{POLL+6}:{POLL+7}]')
        s.i(f's_and_b64 s[{POLL}:{POLL+1}], s[{POLL}:{POLL+1}], s[{POLL+4}:{POLL+5}]')
        s.i(f's_and_b32 s{POLL}, s{POLL}, s{POLL+1}')

    def poll(self, s, mode, sOFF, off, n, want, mask=None):
        if mode == 's':
            s.i(f's_add_u32 s34, s28, {sOFF}\ns_addc_u32 s35, s29, 0')
            s.i('s_waitcnt lgkmcnt(0)')
            lp = self.spin_head(s, 'poll')
            if n == 1: s.i(f's_load_dword s{POLL}, s[34:35], {off} glc')
            else: s.i(f's_load_dwordx{n} s[{POLL}:{POLL+n-1}], s[34:35], {off} glc')
            s.i('s_waitcnt lgkmcnt(0)')
            if n == 8: self.and8(s)
            if mask is not None: s.i(f's_and_b32 s{POLL}, s{POLL}, {mask}')
            s.i(f's_cmp_eq_u32 s{POLL}, {want}\ns_cbranch_scc0 {lp}')
        else:
            s.i(f'v_and_b32 v253, {n-1}, v0\nv_lshlrev_b32 v253, 2, v253')
            lp = self.spin_head(s, 'poll')
            s.i(f'buffer_load_dword v252, v253, {WS}, {sOFF} offen offset:{off} sc1', 'poll')
            s.i('s_waitcnt vmcnt(0)')
            if mask is not None: s.i(f'v_and_b32 v252, {mask}, v252')
            s.i(f'v_cmp_ne_u32 vcc, {want}, v252\ns_nop 4\ns_cbranch_vccnz {lp}')

    def xstores(self, s, items, tag):
        isst = lambda t: t.startswith('buffer')
        if not self.fast:
            for t in items: s.i(t + (' sc1' if isst(t) else ''), tag)
            return
        a, b = self.lab('slow'), self.lab('join')
        s.i(f's_cmp_eq_u32 {sFAST}, 0\ns_cbranch_scc1 {a}')
        for t in items: s.i(t, tag)
        s.i(f'{b}:')
        self.cold += [f'{a}:'] + ['    ' + t + (' sc1' if isst(t) else '') for t in items] + ['    s_nop 0', f'    s_branch {b}']

    def flag_setup(self, s):
        s.i('v_lshlrev_b32 v254, 25, v0\nv_min_u32 v254, 0x1000000, v254\nv_lshlrev_b32 v254, 4, v254\nv_mov_b32 v255, 1')
        s.i(f's_lshl_b32 s68, {sL}, 7\ns_add_u32 s68, s68, {sW}')
        s.i(f's_lshl2_add_u32 s69, {sG}, {sW}\ns_lshl_b32 s69, s69, 7\ns_lshl2_add_u32 s69, {sJ}, s69\ns_add_u32 s69, s69, {WS_OFL}')

    def flag(self, s, kind, tag, always_slow=False):
        st = f'buffer_store_byte v255, v254, {WS}, ' + (f's69 offen' if kind == 'o' else f's68 offen offset:{kind*4}')
        if always_slow or self.opt['slowflag']: s.i(st + ' sc1', tag)
        else: self.xstores(s, [st], tag)

    def fast_test(self, s, part):
        if not self.fast: return
        if self.opt.get('nodbg'):
            s.i(f's_mov_b32 {sFAST}, 1'); return
        if part == 0:
            s.i(f's_lshl_b32 {sT0}, {sG}, 3\ns_add_u32 s34, s32, {sT0}\ns_addc_u32 s35, s33, 0\ns_load_dwordx2 s[{POLL}:{POLL+1}], s[34:35], 0')
            s.i(f's_getreg_b32 {sT0}, hwreg(HW_REG_XCC_ID)\ns_and_b32 {sT0}, {sT0}, 15\ns_or_b32 {sT0}, {sT0}, 0x80\ns_mul_i32 s62, {sT0}, 0x01010101\ns_mov_b32 s63, s62')
        else:
            s.i(f's_waitcnt lgkmcnt(0)\ns_cmp_eq_u64 s[{POLL}:{POLL+1}], s[62:63]\ns_cselect_b32 {sFAST}, 1, 0')

    def xb_off(self, s, dst, partner):
        if partner: s.i(f's_xor_b32 {dst}, {sL}, 1\ns_lshl2_add_u32 {dst}, {dst}, {sW}')
        else: s.i(f's_lshl2_add_u32 {dst}, {sL}, {sW}')
        s.i(f's_lshl_b32 {dst}, {dst}, 12\ns_add_u32 {dst}, {dst}, {WS_X}')

    def w_dma(self, srd, slot, soff, tag, ring=sRING, vo=3):
        it = [f's_add_u32 m0, {ring}, {slot*4096}']
        if isinstance(soff, tuple):
            it.append(f's_add_u32 {sT3}, {soff[0]}, {soff[1]}'); soff = sT3
        for i in range(4):
            it.append((f'buffer_load_dwordx4 v{vo+i}, {srd}, {soff} offen offset:{i*1024} lds', tag))
        return it

    def w_reads(self, dst, slot, tag, ad=7):
        it = []
        for t in range(4):
            it.append((f'ds_read_b64_tr_b16 {vr(dst+4*t,2)}, v{ad+t} offset:{slot*4096}', tag))
            it.append((f'ds_read_b64_tr_b16 {vr(dst+4*t+2,2)}, v{ad+t} offset:{slot*4096+2048}', tag))
        return it

    def g_mfmas(self, wreg, breg, first, order=(0, 1, 2, 3)):
        return [mfma(acc(t, rt), wreg+4*t, breg+4*rt, None if first else acc(t, rt)) for t in order for rt in range(3)]

    def stream_setup(self, s, shift, step):
        s.i(f's_mul_i32 {sRING}, {sW}, 12288')
        if L_V: s.i(f's_add_u32 {sRING}, {sRING}, {L_V}')
        s.i(f'v_lshrrev_b32 v252, 2, v0\nv_bfe_u32 v253, v0, 3, 2')
        s.i(f's_and_b32 {sT0}, {sW}, 1\ns_lshl_b32 {sT0}, {sT0}, 1')
        s.i(f'v_xor_b32 v253, {sT0}, v253\nv_lshlrev_b32 v253, 5, v253\nv_lshl_or_b32 v252, v252, 7, v253')
        s.i(f'v_and_b32 v253, 3, v0\nv_lshl_or_b32 v252, v253, 3, v252')
        for t in range(4):
            s.i(f'v_xor_b32 v253, {t<<5}, v252\nv_add_u32 v{7+t}, {sRING}, v253')
        s.i(f'v_lshrrev_b32 v252, 3, v0\nv_and_b32 v252, 6, v252\nv_xor_b32 v252, v252, v0\nv_and_b32 v252, 7, v252\nv_lshlrev_b32 v252, 4, v252')
        s.i(f'v_lshrrev_b32 v253, 3, v0\nv_lshl_or_b32 v3, v253, {shift}, v252')
        for i in range(1, 4): s.i(f'v_add_u32 v{3+i}, {step*i}, v3')

    def ord_t(self, s, dst, o):
        flip, rot = o
        if rot: s.i(f's_add_u32 {dst}, {sBL}, {rot}\ns_and_b32 {dst}, {dst}, 3')
        src = dst if rot else sBL
        if flip: s.i(f's_xor_b32 {sT1}, {sBH}, 1\ns_lshl2_add_u32 {dst}, {sT1}, {src}')
        else: s.i(f's_lshl2_add_u32 {dst}, {sBH}, {src}')

    def k_addr(self, s):
        s.i('v_bfe_u32 v252, v0, 4, 1\nv_lshrrev_b32 v253, 5, v0\nv_lshl_or_b32 v252, v252, 1, v253\nv_xor_b32 v252, v252, v0\nv_and_b32 v252, 15, v252\nv_lshlrev_b32 v252, 4, v252')
        s.i(f'v_and_b32 v253, 15, v0\nv_lshl_or_b32 v252, v253, 8, v252\ns_lshl_b32 {sT0}, {sW}, 13\nv_add_u32 v2, {sT0}, v252')

    k3alt = False
    def Kreg(self, t, kt, u):
        if t == 3 and self.k3alt: return [88, 92, 120, 124, 216, 220, 224, 228][kt*4 + u]
        return 64 + 32*t + (kt*4 + u)*4
    def Sreg(self, t, kt, rt): return (192 if t == 0 else 64 + 32*(t-1)) + (kt*3 + rt)*4
    def Qreg(self, u, rt): return 16 + (u*3 + rt)*4
    MX, MC, LACC, ONES, TMP = 232, 235, 216, 228, 238

    def k_reads(self, t, base='v2'):
        sl = slot(self.steps.index(('k', t)))
        it = [f'v_add_u32 v11, {SL[sl] + SLW}, {base}'] + [f'v_xor_b32 v{11+u}, {u<<6}, v11' for u in range(1, 4)]
        return it + [(f'ds_read_b128 {vr(self.Kreg(t,kt,u),4)}, v{11+u} offset:{kt*4096}', f'k{t}') for u in range(4) for kt in range(2)]

    def qk_mfmas(self, t, tilemajor=False):
        idx = [(u, kt, rt) for u in range(4) for kt in range(2) for rt in range(3)]
        if tilemajor: idx = [(u, kt, rt) for kt in range(2) for u in range(4) for rt in range(3)]
        return [mfma(self.Sreg(t,kt,rt), self.Kreg(t,kt,u), self.Qreg(u,rt), None if u == 0 else self.Sreg(t,kt,rt)) for u, kt, rt in idx]

    def max_ops(self, t, kts=(0, 1)):
        it = []
        for kt in kts:
            for rt in range(3):
                r = self.Sreg(t, kt, rt); m = self.MX + rt
                if t == 0 and kt == 0:
                    it.append(f'v_max3_f32 v{m}, v{r}, v{r+1}, v{r+2}'); it.append(f'v_max_f32 v{m}, v{m}, v{r+3}')
                else:
                    it.append(f'v_max3_f32 v{m}, v{m}, v{r}, v{r+1}'); it.append(f'v_max3_f32 v{m}, v{m}, v{r+2}, v{r+3}')
        return it

    def qk_last(self, s, extra, M=lambda x: x):
        mm = [M(x) for x in self.qk_mfmas(3, True)]
        s.weave(mm[:15], self.max_ops(2), start=2)
        s.weave(mm[15:], self.max_ops(3, (0,)) + extra)
        for x in self.max_ops(3, (1,)): s.i(x)

    def max_publish(self, s, moff):
        T = self.TMP
        for sw in ('v_permlane32_swap_b32', 'v_permlane16_swap_b32'):
            for rt in range(3): s.i(f'v_mov_b32 v{T+rt}, v{self.MX+rt}')
            for rt in range(3): s.i(f'{sw} v{self.MX+rt}, v{T+rt}')
            for rt in range(3): s.i(f'v_max_f32 v{self.MX+rt}, v{self.MX+rt}, v{T+rt}')
        self.publish(s, [self.MX + rt for rt in range(3)], moff)

    def publish(self, s, r, off):
        s.i(f's_mov_b64 exec, 0xffff\nv_mov_b32 v{r[2]}, v{r[0]}\ns_mov_b32 exec_lo, 0xffff0000\nv_mov_b32 v{r[2]}, v{r[1]}\ns_mov_b64 exec, -1')
        s.i(f'ds_write_b32 v250, v{r[2]} offset:{off}', 'pub')

    def misc_addr(self, s):
        s.i(f'v_and_b32 v251, 15, v0\nv_lshlrev_b32 v251, 4, v251\nv_add_u32 v251, {L_MISC}, v251')
        s.i(f'v_lshrrev_b32 v250, 4, v0\nv_min_u32 v250, 2, v250\nv_lshlrev_b32 v250, 8, v250')
        s.i(f's_lshl_b32 {sT0}, {sW}, 2\nv_add3_u32 v250, {sT0}, v251, v250')

    def exp_setup(self, pbase):
        return [f's_mul_i32 {sT0}, {sW}, 3072', f's_add_u32 {sT0}, {sT0}, {pbase}', f'v_add_u32 v15, {sT0}, v1']

    def exp_phase(self, s, moff, loff, first, hooks, wd=2):
        T = self.TMP
        for rt in range(3): s.i(f'ds_read_b128 {vr(T+4*rt,4)}, v251 offset:{moff + rt*256}', f'mxr{rt}')
        for r in range(4): s.i(f'v_mov_b32 v{self.ONES+r}, 0x3f803f80')
        for it in first: s.emit(it)
        for rt in range(3):
            s.wait(lg=f'mxr{rt}')
            r = T + 4*rt
            s.i(f'v_max3_f32 v{r}, v{r}, v{r+1}, v{r+2}\nv_max_f32 v{r}, v{r}, v{r+3}\nv_mul_f32 v{self.MC+rt}, {sC}, v{r}')
        groups = [(t, rt) for t in TORD for rt in range(3)]
        def fm(t, rt): return [f'v_fma_f32 v{r}, v{r}, {sC}, -v{self.MC+rt}' for kt in range(2) for r in range(self.Sreg(t,kt,rt), self.Sreg(t,kt,rt)+4)]
        def ex(t, rt): return [f'v_exp_f32 v{r}, v{r}' for kt in range(2) for r in range(self.Sreg(t,kt,rt), self.Sreg(t,kt,rt)+4)]
        def cv(t, rt):
            a, b = self.Sreg(t,0,rt), self.Sreg(t,1,rt)
            return [f'v_cvt_pk_bf16_f32 v{a}, v{a}, v{a+1}', f'v_cvt_pk_bf16_f32 v{a+1}, v{a+2}, v{a+3}',
                    f'v_cvt_pk_bf16_f32 v{a+2}, v{b}, v{b+1}', f'v_cvt_pk_bf16_f32 v{a+3}, v{b+2}, v{b+3}']
        def out(t, rt):
            a = self.Sreg(t,0,rt)
            return [(f'ds_write_b128 v15, {vr(a,4)} offset:{t*12288 + rt*1024}', 'pw'),
                    mfma(self.LACC+4*rt, self.ONES, a, None if t == TORD[0] else self.LACC+4*rt)]
        wq_ = []; nw = 0
        for x in fm(*groups[0]): s.i(x)
        for n, g in enumerate(groups):
            if n % 3 == 0: self.stamp(s, f'exp:{n}')
            for it in hooks.get(('pre', n), []): s.emit(it)
            e = ex(*g)
            nf = fm(*groups[n+1]) if n+1 < len(groups) else []
            pc = cv(*groups[n-1]) if n >= 1 else []
            po = []
            if n >= 2: po.append(out(*groups[n-2])[1]); wq_.append(out(*groups[n-2])[0])
            if n >= wd:
                k = min(len(wq_), -(-(10 - nw) // (12 - n)) if wd > 2 else 1)
                po = wq_[:1] + po; nf = nf[:3] + wq_[1:2][:k-1] + nf[3:6] + wq_[2:k] + nf[6:]
                del wq_[:k]; nw += k
            rest = po + pc + nf
            hk = hooks.get(n, [])
            k = 0; h = 0
            for q in range(0, 8, 2):
                s.i(e[q]); s.i(e[q+1])
                tgt = (len(rest)*(q+2) + 7)//8
                while k < tgt: s.emit(rest[k]); k += 1
                tgt = (len(hk)*(q+2) + 7)//8
                while h < tgt: s.emit(hk[h]); h += 1
        assert not wq_
        for x in out(*groups[-2]): s.emit(x)
        for x in cv(*groups[-1]): s.i(x)
        for x in out(*groups[-1]): s.emit(x)
        for it in hooks.get(12, []): s.emit(it)
        self.publish(s, [self.LACC + 4*rt for rt in range(3)], loff)
        self.stamp(s, 'exp:end')

    def kv_table(self, s, TB):
        s.i(f's_lshl_b32 {sT2}, {sG}, 18\ns_and_b32 {sT0}, {sJ}, 1\ns_lshl_b32 {sT0}, {sT0}, 17\ns_add_u32 {sT2}, {sT2}, {sT0}')
        for t, d in TB.items():
            s.i(f's_lshr_b32 {sT0}, {sJ}, 1\ns_add_u32 {sT0}, {sT0}, {t}\ns_and_b32 {sT0}, {sT0}, 3\ns_lshl_b32 {sT0}, {sT0}, 15\ns_add_u32 {d}, {sT0}, {sT2}')

    def v_dma(self, k, TB, vo, tag):
        it = []
        for h in range(2):
            it += [f's_add_u32 m0, s3, {VA[k][h]}', f's_add_u32 {sT3}, {TB[k >> 2]}, {(k & 3)*8192 + h*4096}',
                   (f'buffer_load_dwordx4 {vo}, {V}, {sT3} offen lds', tag)]
        return it

    def lds_wait(self, s, off, bit, T=240):
        lp = self.spin_head(s, 'lw')
        s.i(f'ds_read_b128 {vr(T,4)}, v251 offset:{off}', 'fr')
        s.i(f's_waitcnt lgkmcnt(0)\nv_and_b32 v{T}, v{T}, v{T+1}\nv_and_b32 v{T+2}, v{T+2}, v{T+3}\nv_and_b32 v{T}, v{T}, v{T+2}\nv_readfirstlane_b32 {sT0}, v{T}\ns_bitcmp1_b32 {sT0}, {bit}\ns_cbranch_scc0 {lp}')

    def prologue(self):
        s = Stream('P')
        if self.opt.get('amp'): s.i('s_memrealtime s[70:71]')
        self.stamp(s, 'entry')
        s.i('s_cmp_ge_u32 s2, 256\ns_cbranch_scc1 L_end')
        for n, d in [(0, 4), (3, 16), (1, 8), (2, 12), (4, 20), (5, 24), (6, 32), (7, 28)]:
            s.i(f's_load_dwordx2 s[{d}:{d+1}], s[0:1], {8*n}')
        s.i('v_lshrrev_b32 v1, 6, v0\nv_and_b32 v0, 63, v0\ns_mov_b32 s7, 0x20000')
        s.i('v_readfirstlane_b32 s3, v1\nv_lshlrev_b32 v1, 4, v0')
        s.i(f's_cmp_lg_u32 s3, 0\ns_cbranch_scc1 L_nopf')
        s.i(f's_getpc_b64 s[60:61]\nL_pcref:\ns_sub_u32 s60, s60, L_pcref-{NAME}\ns_subb_u32 s61, s61, 0\ns_mov_b32 s62, L_codeend-{NAME}\ns_mov_b32 s63, s7')
        s.i(f's_lshr_b32 {sT0}, s2, 3\ns_lshl_b32 {sT0}, {sT0}, 10')
        self.raw(s, f'buffer_load_dwordx4 v[240:243], v1, s[60:63], {sT0} offen')
        s.i('L_nopf:')
        s.i(f's_and_b32 {sHKV}, s2, 3\ns_bfe_u32 {sBH}, s2, 0x10002\ns_lshr_b32 {sBL}, s2, 6\ns_bfe_u32 {sJ}, s2, 0x30003')
        if self.opt.get('jxor'): s.i(f's_xor_b32 {sJ}, {sJ}, {self.opt["jxor"]}')
        if self.opt.get('swapmap'): s.i(f's_bfe_u32 {sBL}, s2, 0x20003\ns_lshr_b32 {sJ}, s2, 5')
        s.i(f's_lshl2_add_u32 {sB}, {sBH}, {sBL}\ns_lshl2_add_u32 {sG}, {sB}, {sHKV}\ns_lshl3_add_u32 {sL}, {sG}, {sJ}\ns_and_b32 {sW}, s3, 3')
        s.i('s_cmp_lt_u32 s3, 4\ns_cbranch_scc1 L_roleA')
        self.stamps['A'] = list(self.stamps['P']); self.stamps['B'] = list(self.stamps['P'])
        return s

    def srds(self, s, lst):
        for d, n in lst:
            s.i(f's_mov_b32 s{d+2}, {n}')
            if d != 4: s.i(f's_mov_b32 s{d+3}, s7')

    def roleA(self, s):
        o = self.opt
        s.i('L_roleA:')
        self.srds(s, [(12, 8<<20), (28, 256<<20)])
        s.i('s_waitcnt lgkmcnt(0)')
        skip = self.lab('noclr')
        s.i(f's_cmp_eq_u32 {sW}, 0\ns_cbranch_scc0 {skip}')
        s.i(f's_lshl_b32 {sT0}, {sG}, 9\ns_lshl2_add_u32 {sT0}, {sJ}, {sT0}\ns_add_u32 {sT0}, {sT0}, {WS_OFL}\ns_lshl_b32 {sT1}, {sL}, 7')
        s.i(f'v_lshlrev_b32 v3, 7, v0\nv_lshlrev_b32 v5, 2, v0\nv_mov_b32 v4, 0\ns_mov_b64 exec, 15')
        self.raw(s, f'buffer_store_dword v4, v3, {WS}, {sT0} offen sc1')
        self.raw(s, f'buffer_store_dword v4, v5, {WS}, {sT1} offen sc1')
        s.i('s_mov_b64 exec, -1')
        s.i(f's_getreg_b32 {sT0}, hwreg(HW_REG_XCC_ID)\ns_and_b32 {sT0}, {sT0}, 15\ns_or_b32 {sT0}, {sT0}, 0x80')
        s.i(f's_and_b32 {sT1}, {sL}, 3\ns_lshl_b32 {sT1}, {sT1}, 3\ns_lshl_b32 {sFAST}, {sT0}, {sT1}')
        s.i(f's_andn2_b32 {sT1}, {sL}, 3\ns_add_u32 s34, s32, {sT1}\ns_addc_u32 s35, s33, 0')
        s.i(f's_waitcnt vmcnt(0)')
        if not o.get('nodbg'): s.i(f's_atomic_or {sFAST}, s[34:35], 0')
        s.i(f'{skip}:')
        s.i('v_lshrrev_b32 v252, 4, v0\nv_xor_b32 v252, v252, v0\nv_and_b32 v252, 15, v252\nv_lshlrev_b32 v252, 4, v252\nv_and_b32 v253, 15, v0\nv_lshl_or_b32 v196, v253, 8, v252')
        for u in range(1, 4): s.i(f'v_xor_b32 v{196+u}, {u<<6}, v196')
        s.i(f'v_bfe_u32 v252, v0, 2, 3\ns_lshl_b32 {sT0}, {sW}, 1\nv_xor_b32 v252, {sT0}, v252\nv_lshlrev_b32 v252, 5, v252\nv_lshrrev_b32 v253, 2, v0\nv_lshl_or_b32 v252, v253, 8, v252')
        s.i(f'v_and_b32 v253, 3, v0\nv_lshl_or_b32 v200, v253, 3, v252\nv_xor_b32 v201, 32, v200')
        for sl in (1, 2):
            for n in range(6): s.i(f'v_add_u32 v{196+6*sl+n}, {SL[sl]}, v{196+n}')
        self.k_addr(s)
        s.i('v_mov_b32 v7, v200\nv_mov_b32 v8, v201\nv_add_u32 v9, 0x10000, v200\nv_add_u32 v10, 0x10000, v201')
        s.i(f'v_lshrrev_b32 v252, 4, v0\ns_lshl_b32 {sT0}, {sW}, 2\nv_add_u32 v252, {sT0}, v252\nv_lshlrev_b32 v253, 1, v252\nv_xor_b32 v253, v253, v0\nv_and_b32 v253, 15, v253\nv_lshlrev_b32 v253, 4, v253\nv_lshl_or_b32 v3, v252, 8, v253')
        VT = {3: f's{TAB+3}'}
        self.kv_table(s, VT)
        s.i(f's_lshl_b32 s3, {sW}, 10')
        s.i('v_and_b32 v4, 15, v0\nv_lshlrev_b32 v4, 4, v4')
        self.flag_setup(s)
        self.misc_addr(s)
        s.i(f's_mov_b32 {sC}, {CEXP:#x}')
        sXO, sXP = f's{TAB+4}', f's{TAB+5}'
        self.xb_off(s, sXO, False); self.xb_off(s, sXP, True)
        s.i(f's_mul_i32 {sT0}, {sW}, 3072\ns_add_u32 {sT0}, {sT0}, {L_Q}\nv_add_u32 v15, {sT0}, v1\nv_add_u32 v249, {L_Q}, v1')
        WB = [40, 96]; XB = [112, 136]
        def reads(n, sl):
            half = n & 1; A0 = 196 + 6*sl; it = []
            for ks in range(2):
                u = 2*half + ks
                it += [(f'ds_read_b128 {vr(XB[half]+12*ks+4*rt,4)}, v{A0+u} offset:{rt*4096}', f'r{n}_{ks}') for rt in range(3)]
                for tt in range(2):
                    for h in range(2):
                        it.append((f'ds_read_b64_tr_b16 {vr(WB[half]+8*ks+4*tt+2*h,2)}, v{A0+4+tt} offset:{SLW + u*8192 + h*4096}', f'r{n}_{ks}'))
            return it
        def mf(n):
            half = n & 1; it = []
            for ks in range(2):
                it.append({'lg': f'r{n}_{ks}'})
                it += [mfma(acc(tt, rt), WB[half]+8*ks+4*tt, XB[half]+12*ks+4*rt, None if (n == 0 and ks == 0) else acc(tt, rt)) for tt in range(2) for rt in range(3)]
            return it
        pend = []
        for si, (kind, t) in enumerate(self.steps[:NS]):
            s.i('s_barrier')
            if si == 0: self.stamp(s, 'b0')
            self.stamp(s, f'p1:{si}')
            if True:
                s.weave(pend + ['s_nop 0'], reads(2*t, slot(si)), per=3); pend = []
                s.weave(mf(2*t), reads(2*t+1, slot(si)), start=1, per=2)
                m = mf(2*t+1)
                cut = len(m) if si == NS-1 else max(8, o['p1bar'] + 2)
                for it in m[:cut]: s.emit(it)
                pend = m[cut:]
            if si == NS-3: self.fast_test(s, 0)
            if si == NS-2: self.fast_test(s, 1)
        self.stamp(s, 'T1')
        for rt in range(3):
            d = 112 + 4*rt
            for tt in range(2):
                a = acc(tt, rt)
                s.i(f'v_cvt_pk_bf16_f32 v{d+2*tt}, v{a}, v{a+1}\nv_cvt_pk_bf16_f32 v{d+2*tt+1}, v{a+2}, v{a+3}')
        self.stamp(s, 'qk:cv')
        for rt in range(3):
            d = 112 + 4*rt
            s.i(f'v_permlane16_swap_b32 v{d}, v{d+2}\nv_permlane16_swap_b32 v{d+1}, v{d+3}')
        self.stamp(s, 'qk:sw')
        for rt in range(3): s.i(f'ds_write_b128 v15, {vr(112+4*rt,4)} offset:{rt*1024}', 'qw')
        self.stamp(s, 'qk:qw')
        self.xstores(s, [f'buffer_store_dwordx4 {vr(112+4*rt,4)}, v1, {WS}, {sXP} offen offset:{rt*1024}' for rt in range(3)], 'qs')
        s.i('s_waitcnt lgkmcnt(0)\ns_barrier')
        self.stamp(s, 'bq')
        for u in range(4):
            for rt in range(3): s.i(f'ds_read_b128 {vr(self.Qreg(u,rt),4)}, v249 offset:{(u*3+rt)*1024}', f'q')
        s.wait(vm='qs'); self.flag(s, 0, 'qf')
        self.stamp(s, 'qflag')
        s.wait(lg='q')
        held = []
        for t in range(4):
            kr = self.k_reads(t)
            for it in kr[:4]: s.emit(it)
            s.i('s_barrier')
            self.stamp(s, f'qk:b{t}')
            if t == 3: self.stamp(s, 'b11')
            s.weave(held + ['s_nop 0'], kr[4:], per=2)
            if t == 3: break
            s.wait(lg=f'k{t}')
            mm = self.qk_mfmas(t); cut = 24 - o.get('qhold', 6)
            s.weave(mm[:cut], self.max_ops(t-1) if t else [], start=2, per=1)
            held = mm[cut:]
        s.wait(lg='k3')
        self.qk_last(s, self.exp_setup(L_PA))
        self.stamp(s, 'qk:3')
        self.max_publish(s, M_MAXA)
        self.stamp(s, 'qk:pub')
        s.i('s_waitcnt lgkmcnt(0)\ns_barrier')
        self.stamp(s, 'bmaxA')
        self.exp_phase(s, M_MAXA, M_LA, [], {12: ['v_mov_b32 v252, 0', (f'ds_write_b32 v250, v252 offset:{M_FLG}', 'fz')]}, o['wdA'])
        self.stamp(s, 'expA')
        s.i(f'v_add_u32 v15, {L_PA}, v1')
        s.i('s_waitcnt lgkmcnt(0)\ns_barrier')
        self.stamp(s, 'bPA')
        PF = [40, 192]
        def p_reads(n, buf, tag): return [(f'ds_read_b128 {vr(PF[buf]+4*m,4)}, v15 offset:{n*6144 + m*1024}', tag) for m in range(6)]
        def vrd(k):
            return [(f'ds_read_b64_tr_b16 {vr(Vreg(k)+4*tt+2*h,2)}, v{7 + tt + 2*(VA[k][h] >> 16)} offset:{VA[k][h] & 0xffff}', f'vr{k}') for tt in range(2) for h in range(2)]
        def pv(n, buf, first):
            return [mfma(acc(tt, rt), Vreg(2*n+ks)+4*tt, PF[buf]+12*ks+4*rt, None if (first and ks == 0) else acc(tt, rt)) for ks in range(2) for tt in range(2) for rt in range(3)]
        def capped(items):
            out = []
            for x in items:
                out.append(lambda x=x: (s.i('s_waitcnt lgkmcnt(10)') if len(s.lg) - s.lg_done >= 14 else None, s.emit(x)))
            return out
        T = self.TMP
        for it in p_reads(0, 0, 'a0')[:3] + vrd(0) + p_reads(0, 0, 'a0')[3:] + vrd(1): s.emit(it)
        def stats(dst_lse):
            st = []
            for rt in range(3):
                r = T + 4*rt
                st += [f'v_add_f32 v{r}, v{r}, v{r+1}', f'v_add_f32 v{r+2}, v{r+2}, v{r+3}', f'v_add_f32 v{r}, v{r}, v{r+2}',
                       f'v_rcp_f32 v{232+rt}, v{r}', f'v_log_f32 v{r}, v{r}']
            return st + [f'v_add_f32 v{dst_lse+rt}, v{T+4*rt}, v{self.MC+rt}' for rt in range(3)]
        vsched = {0: [2, 3, 6, 7], 1: [4, 5, 8], 2: [9], 4: [10, 11]}
        for n in range(8):
            mm = pv(n, n & 1, n == 0)
            if n == 0:
                s.wait(lg='vr0'); mm = mm[:6] + [{'lg': 'vr1'}] + mm[6:]
            else:
                s.wait(lg=f'a{n}'); s.wait(lg=f'vr{2*n}'); s.wait(lg=f'vr{2*n+1}')
            self.stamp(s, f'pva:{n}')
            fill = []
            if n == 2: fill += [{'lg': 'vr8'}, 's_barrier'] + self.v_dma(12, VT, 'v3', 'v') + self.v_dma(13, VT, 'v3', 'v')
            if n == 3: fill += self.v_dma(14, VT, 'v3', 'v') + self.v_dma(15, VT, 'v3', 'v')
            if n + 1 < 8: fill = capped(p_reads(n+1, (n+1) & 1, f'a{n+1}')) + fill
            fill += capped(sum([vrd(k) for k in vsched.get(n, [])], []))
            if n == 3: fill += [(f'ds_read_b128 {vr(T+4*rt,4)}, v251 offset:{M_LA + rt*256}', 'la') for rt in range(3)]
            if n == 5:
                s.weave(mm[:o['v2m']], fill, per=2); mm = mm[o['v2m']:]
                s.wait(vm='v'); s.i('s_barrier')
                fill = capped(vrd(12) + vrd(13))
            if n == 6: fill += capped(vrd(14) + vrd(15))
            if n == 7: fill += ['s_barrier'] + stats(228) + [f'v_min_u32 v{228+rt}, -2, v{228+rt}' for rt in range(3)]
            s.weave(mm, fill, per=2)
        self.stamp(s, 'PVA')
        if o['prioB']: s.i(f's_setprio {o["prioB"]+1}')
        s.i(f'v_add_u32 v15, {L_PB}, v1')
        for rt in range(3):
            for tt in range(2):
                a = acc(tt, rt); d = 216 + 4*rt + 2*tt
                for e in range(4): s.i(f'v_mul_f32 v{a+e}, v{a+e}, v{232+rt}')
                s.i(f'v_cvt_pk_bf16_f32 v{d}, v{a}, v{a+1}\nv_cvt_pk_bf16_f32 v{d+1}, v{a+2}, v{a+3}')
                s.i(f'v_min_u32 v{d}, -2, v{d}\nv_min_u32 v{d+1}, -2, v{d+1}')
        def posend():
            self.xstores(s, [f'buffer_store_dwordx4 {vr(216+4*n,4)}, v1, {WS}, {sXO} offen offset:{n*1024}' for n in range(3)] +
                         ['s_mov_b64 exec, 0xffff', f'buffer_store_dwordx4 v[228:231], v1, {WS}, {sXO} offen offset:3072', 's_mov_b64 exec, -1'], 'pos')
        if o['poearly']: posend()
        if o['prioB']: s.i('s_setprio 0')
        s.i('s_barrier')
        self.stamp(s, 'bPB')
        UL = [u for t in TORD for u in (2*t, 2*t+1)]
        for it in p_reads(UL[0], 0, 'c0'): s.emit(it)
        if not o['poearly']: posend()
        st = [(f'ds_read_b128 {vr(T+4*rt,4)}, v251 offset:{M_MAXB + rt*256}', 'sb') for rt in range(3)]
        st1 = [{'lg': 'sb'}]
        for rt in range(3):
            r = T + 4*rt
            st1 += [f'v_max3_f32 v{r}, v{r}, v{r+1}, v{r+2}', f'v_max_f32 v{r}, v{r}, v{r+3}', f'v_mul_f32 v{self.MC+rt}, {sC}, v{r}']
        st2 = [(f'ds_read_b128 {vr(T+4*rt,4)}, v251 offset:{M_LB + rt*256}', 'sc') for rt in range(3)]
        st3 = [{'lg': 'sc'}] + stats(self.MC)
        pol = [(f'buffer_load_dwordx4 v[228:231], v4, {WS}, {sXP} offen offset:3072 sc1', 'pol')] + \
              [(f'buffer_load_dwordx4 {vr(216+4*n,4)}, v1, {WS}, {sXP} offen offset:{n*1024} sc1', 'pol') for n in range(3)]
        for n, u in enumerate(UL):
            s.wait(lg=f'c{n}')
            self.stamp(s, f'pvb:{n}')
            mm = pv(u, n & 1, n == 0)
            fill = []
            if n + 1 < 8: fill += p_reads(UL[n+1], (n+1) & 1, f'c{n+1}')
            if n == 0: fill += st
            if n == 1: fill += st1
            if n == 4: fill += st2
            if n == o['pk']: fill += pol
            if n == 6: fill += st3
            s.weave(mm, fill, per=2)
        self.stamp(s, 'PVB')
        chk = self.lab('pochk')
        s.i(f's_mov_b32 {sCNT}, 0\n{chk}:')
        s.i('s_waitcnt vmcnt(0)')
        s.i('v_max3_u32 v246, v216, v217, v218\nv_max3_u32 v247, v219, v220, v221')
        for n in (222, 226): s.i(f'v_max3_u32 v246, v246, v{n}, v{n+1}\nv_max3_u32 v247, v247, v{n+2}, v{n+3}')
        s.i(f'v_max3_u32 v246, v246, v230, v247\nv_cmp_eq_u32 vcc, -1, v246')
        for rt in range(3): s.i(f'v_sub_f32 v{240+rt}, v{self.MC+rt}, v{228+rt}\nv_sub_f32 v{243+rt}, v{228+rt}, v{self.MC+rt}')
        rl = self.lab('poreload')
        s.i(f's_cbranch_vccnz {rl}')
        self.cold += [f'{rl}:', f'    s_add_u32 {sCNT}, {sCNT}, 1', f'    s_cmp_gt_u32 {sCNT}, {SPIN_MAX}', '    s_cbranch_scc1 L_end'] + ['    ' + x[0] for x in pol] + [f'    s_branch {chk}']
        self.stamp(s, 'pogot')
        for n in range(6): s.i(f'v_exp_f32 v{240+n}, v{240+n}')
        for n in range(6): s.i(f'v_add_f32 v{240+n}, 1.0, v{240+n}')
        for n in range(6): s.i(f'v_rcp_f32 v{240+n}, v{240+n}')
        for rt in range(3): s.i(f'v_mul_f32 v{232+rt}, v{232+rt}, v{243+rt}')
        for rt in range(3):
            for tt in range(2):
                a = acc(tt, rt); d = 216 + 4*rt + 2*tt
                for h in range(2):
                    s.i(f'v_lshlrev_b32 v246, 16, v{d+h}\nv_and_b32 v247, 0xffff0000, v{d+h}')
                    s.i(f'v_mul_f32 v246, v246, v{240+rt}\nv_mul_f32 v247, v247, v{240+rt}')
                    s.i(f'v_fmac_f32 v246, v{a+2*h}, v{232+rt}\nv_fmac_f32 v247, v{a+2*h+1}, v{232+rt}')
                    s.i(f'v_cvt_pk_bf16_f32 v{d+h}, v246, v247')
            self.xstores(s, [f'buffer_store_dwordx4 {vr(216+4*rt,4)}, v1, {WS}, {sXP} offen offset:{rt*1024}'], 'os')
        self.stamp(s, 'T2')
        s.i(f'ds_write_b32 v250, v255 offset:{M_FLG}', 'fw')
        s.i(f's_lshl_b32 {sT2}, {sG}, 5\ns_add_u32 {sT2}, {sT2}, {sW}\ns_lshl_b32 {sT2}, {sT2}, 12\ns_add_u32 {sT2}, {sT2}, {WS_X}\ns_mul_i32 {sRING}, {sW}, 3072')
        for t in range(8):
            self.ord_t(s, f's{TAB+t}', ORDS[o['woord']][t])
            s.i(f's_lshl_b32 s{TAB+t}, s{TAB+t}, 14\ns_add_u32 s{TAB+t}, s{TAB+t}, {sT2}')
        s.i(f's_lshl2_add_u32 {sT2}, {sG}, {sW}\ns_lshl_b32 {sT2}, {sT2}, 7\ns_add_u32 {sT2}, {sT2}, {WS_OFL}')
        s.wait(vm='os')
        self.stamp(s, 'o:ack')
        self.flag(s, 'o', 'of')
        self.lds_wait(s, M_FLG, 0)
        self.stamp(s, 'o:done')
        self.poll(s, o['opoll'], sT2, 0, 8, 1)
        self.stamp(s, 'oflags')
        def o_dma(t):
            s.i(f's_add_u32 m0, {sRING}, {L_O + t*12288}')
            for rt in range(3): s.i(f'buffer_load_dwordx4 v1, {WS}, s{TAB+t} offen offset:{rt*1024} sc1 lds', f'o{t}')
        for t in range(4): o_dma(t)
        for i, t in enumerate(self.OBARS):
            last = (self.OBARS + [8])[i+1] - 1
            s.wait(vm=f'o{last}')
            s.i('s_barrier')
            if i == 0: o_dma(4); o_dma(5)
            if i == 1: o_dma(6); o_dma(7)
            if i == 2:
                s.i(f's_lshl2_add_u32 {sT0}, {sB}, {sW}\ns_lshl3_add_u32 {sT0}, {sT0}, {sJ}\ns_lshl_b32 {sT2}, {sT0}, 7')
                self.poll(s, 's', sT2, 4, 1, '0x01010101')
        if o['wb']:
            skip = self.lab('nowb')
            s.i(f's_or_b32 {sT0}, {sW}, {sJ}\ns_or_b32 {sT0}, {sT0}, {sBL}\ns_cbranch_scc1 {skip}')
            self.raw(s, 'buffer_wbl2 sc1')
            s.i(f'{skip}:')
        self.stamp(s, 'odone')
        if self.diag: s.i('s_barrier')
        self.dump_stamps(s)
        s.i('s_endpgm')

    OBARS = [0, 1, 3, 5]

    def roleB(self, s):
        o = self.opt
        self.k3alt = False
        sK1, sK2, sXS, sWS = 's52', 's53', 's54', 's55'
        self.srds(s, [(4, 384*2048), (16, 8<<20)])
        s.i(f'v_lshrrev_b32 v4, 4, v0\ns_lshl_b32 {sT0}, {sW}, 2\nv_add_u32 v5, {sT0}, v4')
        s.i(f'v_xor_b32 v6, v5, v0\nv_and_b32 v6, 15, v6\nv_lshlrev_b32 v6, 4, v6\nv_lshl_or_b32 v2, v5, 11, v6')
        s.i(f'v_lshlrev_b32 v7, 1, v5\nv_xor_b32 v7, v7, v0\nv_and_b32 v7, 15, v7\nv_lshlrev_b32 v7, 4, v7\nv_add_u32 v8, {sT0}, v5\nv_lshl_or_b32 v3, v8, 13, v7')
        s.i(f's_lshl_b32 s3, {sW}, 10\ns_mul_i32 {sXS}, {sB}, {48*2048}\ns_lshl3_add_u32 {sWS}, {sHKV}, {sJ}\ns_lshl_b32 {sWS}, {sWS}, 8')
        s.i(f's_mov_b32 {sK1}, 0x8000\ns_mov_b32 {sK2}, {0x40000 - 0x8000}')
        VT = {0: 's4', 1: 's5', 2: 's6', 3: 's16'}
        def issue(si, first=False):
            kind, t = self.steps[si]; base = SL[slot(si)]; tag = f's{si}'
            if kind == 'w':
                self.ord_t(s, sT0, ORDS[o['wqord']][t])
                if o.get('jrot', 1): s.i(f's_add_u32 {sT0}, {sT0}, {sJ}\ns_and_b32 {sT0}, {sT0}, 7')
                s.i(f's_lshl_b32 {sT2}, {sT0}, 8\ns_add_u32 {sT2}, {sT2}, {sXS}\ns_lshl_b32 {sT3}, {sT0}, 20\ns_add_u32 {sT3}, {sT3}, {sWS}')
                s.i(f's_add_u32 m0, s3, {base}' if base else f's_mov_b32 m0, s3')
                if first: s.i('s_waitcnt lgkmcnt(0)')
                for rt in range(3):
                    s.i(f'buffer_load_dwordx4 v2, {X}, {sT2} offen lds', tag)
                    s.i(f's_addk_i32 m0, 4096')
                    if rt < 2: s.i(f's_add_u32 {sT2}, {sT2}, {sK1}')
                for n in range(8):
                    s.i(f'buffer_load_dwordx4 v3, {WQ}, {sT3} offen lds', tag)
                    if n < 7: s.i(f's_addk_i32 m0, 4096\ns_add_u32 {sT3}, {sT3}, {sK2 if n & 1 else sK1}')
            else:
                s.i(f's_add_u32 m0, s3, {base + SLW}\ns_mov_b32 {sT3}, {VT[t]}')
                for n in range(8):
                    s.i(f'buffer_load_dwordx4 v247, {K}, {sT3} offen lds', tag)
                    if n < 7: s.i(f's_addk_i32 m0, 4096\ns_addk_i32 {sT3}, 4096')
        issue(0, True); issue(1)
        s.i('L_first_end:')
        self.srds(s, [(8, 8<<20), (12, 8<<20), (20, 8<<20), (24, 384*2048), (28, 256<<20)])
        s.i('v_lshl_or_b32 v247, v5, 8, v6\nv_lshl_or_b32 v248, v5, 8, v7')
        self.kv_table(s, {t: f's{TAB+t}' for t in range(4)})
        s.i(f's_mov_b32 {sC}, {CEXP:#x}')
        s.i('v_mov_b32 v10, v2')
        self.k_addr(s)
        s.i('v_mov_b32 v249, v2\nv_mov_b32 v2, v10')
        self.misc_addr(s)
        self.flag_setup(s)
        sGOT, sQM, sQX = 's19', 's33', 's32'
        qld = [f's_mul_i32 {sT0}, {sW}, 3072', f's_add_u32 m0, {sT0}, {L_Q2}', f's_mov_b32 {sGOT}, 1'] + \
              [f'buffer_load_dwordx4 v1, {WS}, {sQX} offen offset:{rt*1024} sc1 lds' for rt in range(3)]
        nv = 0
        def vgo(n, emit=None):
            nonlocal nv
            for k in range(nv, nv + n):
                for it in self.v_dma(k, VT, 'v2', 'v'): (emit or s.emit)(it)
            nv += n
        for si, (kind, t) in enumerate(self.steps):
            if si == NS:
                s.i('s_barrier')
                self.stamp(s, 'bq')
                if not o['k1early']: issue(NS + 1)
            if si == NS + 3:
                a = self.lab('wq')
                s.i(f's_cmp_lg_u32 {sGOT}, 0\ns_cbranch_scc1 {a}')
                s.wait(vm=f's{si}')
                s.i(f'{a}:')
                self.raw(s, f's_waitcnt vmcnt(11)')
            else:
                s.wait(vm='qp' if si == NS + 2 else f's{si}')
            s.i('s_waitcnt lgkmcnt(0)') if si and self.steps[si-1][0] == 'k' else None
            s.i('s_barrier')
            if si == 0: self.stamp(s, 'b0')
            if si + 2 < NS + 4 and (si + 2 != NS + 1 or o['k1early']): issue(si + 2)
            if si == NS: s.i(f'buffer_load_dword v244, v254, {WS}, s17 offen sc1', 'qp')
            if si == NS + 2:
                skip = self.lab('noq')
                s.i(f'v_readfirstlane_b32 {sT0}, v244\ns_and_b32 {sT0}, {sT0}, {sQM}\ns_cbranch_scc0 {skip}')
                for x in qld: self.raw(s, x)
                vgo(4, lambda it: self.raw(s, it if isinstance(it, str) else it[0])); nv = 0
                s.i(f'{skip}:')
            if si == NS-3:
                for tt in range(4): s.i(f's_mov_b32 {VT[tt]}, s{TAB+tt}')
                s.i('v_mov_b32 v2, v248')
            if si == NS-4: self.fast_test(s, 0)
            if si == NS-3: self.fast_test(s, 1)
            if kind == 'k':
                for it in self.k_reads(t, 'v249'): s.emit(it)
            if si == NS-2 and not o.get('nodbg'):
                s.i(f's_lshl_b32 {sT0}, {sB}, 5\ns_add_u32 s34, s32, {sT0}\ns_addc_u32 s35, s33, 0\ns_load_dwordx8 s[{POLL}:{POLL+7}], s[34:35], 0')
            if si == NS-1 and not o.get('nodbg'):
                ok = self.lab('dbgok')
                s.i('s_waitcnt lgkmcnt(0)')
                self.and8(s)
                s.i(f's_and_b32 s{POLL}, s{POLL}, 0x80808080\ns_cmp_eq_u32 s{POLL}, 0x80808080\ns_cbranch_scc1 {ok}')
                s.i(f's_mov_b32 s60, s32\ns_mov_b32 s61, s33\ns_mov_b32 s62, 256\ns_mov_b32 s63, 0x20000\ns_lshl_b32 {sT1}, {sB}, 5\nv_and_b32 v253, 31, v0')
                lp = self.spin_head(s, 'dbg')
                self.raw(s, f'buffer_load_ubyte v252, v253, s[60:63], {sT1} offen sc1')
                self.raw(s, 's_waitcnt vmcnt(0)')
                s.i(f'v_cmp_eq_u32 vcc, 0, v252\ns_nop 4\ns_cbranch_vccnz {lp}')
                s.i(f'{ok}:')
            if si == NS-2 and o['touch']:
                s.i(f's_xor_b32 {sT0}, {sL}, 1\ns_lshl_b32 {sT0}, {sT0}, 7\ns_add_u32 s34, s28, {sT0}\ns_addc_u32 s35, s29, 0\ns_load_dwordx2 s[0:1], s[34:35], 60')
                s.i(f's_andn2_b32 {sT0}, s69, 127\ns_add_u32 s34, s28, {sT0}\ns_addc_u32 s35, s29, 0\ns_load_dwordx2 s[18:19], s[34:35], 60')
                if o.get('nodbg'): s.i('s_waitcnt lgkmcnt(0)')
            if si == NS-1:
                s.i(f's_xor_b32 s17, {sL}, 1\ns_lshl_b32 s17, s17, 7\ns_add_u32 s34, s28, s17\ns_addc_u32 s35, s29, 0')
                s.i(f's_lshl_b32 {sQM}, {sW}, 3\ns_lshl_b32 {sQM}, 1, {sQM}\ns_mov_b32 {sGOT}, 0')
                self.xb_off(s, sQX, False)
                for r in range(4): s.i(f'v_mov_b32 v{240+r}, -1')
                s.i(f'v_lshrrev_b32 v246, 1, v0\nv_lshlrev_b32 v246, 11, v246\nv_and_b32 v245, 1, v0\nv_lshl_or_b32 v246, v245, 7, v246')
                s.i(f's_lshl_b32 {sT2}, {sHKV}, 21\ns_lshl_b32 {sT0}, {sW}, 16\ns_add_u32 {sT2}, {sT2}, {sT0}\ns_lshl_b32 {sT0}, {sJ}, 8\ns_add_u32 {sT2}, {sT2}, {sT0}')
                for n in range(2):
                    self.ord_t(s, f's{n}', (n, 0))
                    s.i(f's_lshl_b32 s{n}, s{n}, 18\ns_add_u32 s{n}, s{n}, {sT2}')
                self.stream_setup(s, 11, 15360)
                s.i(f's_lshl_b32 {sT2}, {sHKV}, 21\ns_and_b32 {sT0}, {sW}, 1\ns_lshl_b32 {sT0}, {sT0}, 17\ns_add_u32 {sT2}, {sT2}, {sT0}')
                s.i(f's_lshl_b32 {sT0}, {sJ}, 8\ns_add_u32 {sT2}, {sT2}, {sT0}\ns_lshr_b32 {sT0}, {sW}, 1\ns_lshl_b32 {sT0}, {sT0}, 7\ns_add_u32 {sT2}, {sT2}, {sT0}')
                for tt in range(8):
                    self.ord_t(s, f's{TAB+tt}', ORDS[o['woord']][tt])
                    s.i(f's_lshl_b32 s{TAB+tt}, s{TAB+tt}, 18\ns_add_u32 s{TAB+tt}, s{TAB+tt}, {sT2}')
        wo_off = lambda k: f's{TAB+(k>>1)}' if k % 2 == 0 else (f's{TAB+(k>>1)}', 32*2048)
        self.stamp(s, 'b11')
        got = self.lab('qgot')
        s.i(f's_cmp_lg_u32 {sGOT}, 0\ns_cbranch_scc1 {got}')
        self.poll(s, 'v', 's17', 0, 1, sQM, sQM)
        for x in qld: s.i(x, 'q2')
        vgo(4)
        s.i(f'{got}:')
        self.stamp(s, 'qseen')
        vgo(o['vmid'])
        assert nv <= 10
        s.i(f'v_add_u32 v249, {L_Q2}, v1')
        s.wait(vm='q2')
        self.stamp(s, 'tq')
        s.i('s_waitcnt lgkmcnt(0)\ns_barrier')
        self.stamp(s, 'bmaxA')
        def poison():
            self.xstores(s, [f'buffer_store_dwordx4 v[240:243], v1, {WS}, {sQX} offen offset:{n*1024}' for n in range(3)] +
                         ['s_mov_b64 exec, 0xffff', f'buffer_store_dwordx4 v[240:243], v1, {WS}, {sQX} offen offset:3072', 's_mov_b64 exec, -1'], 'clr')
        for u in range(4):
            for rt in range(3): s.i(f'ds_read_b128 {vr(self.Qreg(u,rt),4)}, v249 offset:{(u*3+rt)*1024}', f'q{u}')
        s.i('v_mov_b32 v11, v246')
        rest = [self.v_dma(k, VT, 'v2', 'v')[3*h:3*h+3] for k in range(nv, 12) for h in range(2)]
        vb = {o['vb0'] + n*o['vbs']: x for n, x in enumerate(rest)}
        assert max(vb) < 96
        cnt = [0]
        def M(x):
            def f():
                s.i(x);
                if cnt[0] == o['poisonm']: poison()
                if cnt[0] == o['cfm']:
                    s.wait(vm='clr'); self.flag(s, 2, 'cf', always_slow=True)
                for it in vb.get(cnt[0], []): s.emit(it)
                cnt[0] += 1
            return f
        mm = [M(x) for x in self.qk_mfmas(0)]
        for u in range(4):
            s.wait(lg=f'q{u}')
            for x in mm[6*u:6*u+6]: s.emit(x)
        for t in (1, 2): s.weave([M(x) for x in self.qk_mfmas(t)], self.max_ops(t-1), start=3)
        self.qk_last(s, self.exp_setup(L_PB), M)
        self.max_publish(s, M_MAXB)
        self.stamp(s, 'QKB')
        s.wait(vm='v')
        s.i('s_waitcnt lgkmcnt(0)\ns_barrier')
        if o['prioB']: s.i(f's_setprio {o["prioB"]}')
        RW, NP = 3, 10
        v3g = o.get('v3g', 9)
        assert o['v1g'] < o['v2g'] <= max(5, o['wdB'] + 1) and o['v2g'] < v3g <= 11
        hooks = {('pre', o['v1g']): ['s_barrier'], ('pre', o['v2g']): ['s_barrier'], ('pre', v3g): ['s_barrier']}
        for n, g in enumerate(self.ints('pf')):
            hooks.setdefault(g, []).append((f'buffer_load_dword v{252+n}, v11, {WO}, s{n} offen', 'pf'))
        wog = self.ints('wog')
        for k in range(3):
            assert wog[k] >= o['v2g']
            hooks.setdefault(wog[k], []).extend(self.w_dma(WO, k, wo_off(k), f'w{k}'))
        wp = []
        hooks.setdefault(7, []).insert(0, f's_load_dword s{POLL}, s[34:35], 8 glc')
        def chk():
            lp, ok = self.lab('cfpoll'), self.lab('cfok')
            s.i(f's_waitcnt lgkmcnt(0)\ns_mov_b32 {sCNT}, 0\ns_cmp_eq_u32 s{POLL}, 0x01010101\ns_cbranch_scc0 {lp}\n{ok}:')
            self.cold += [f'{lp}:', f'    s_add_u32 {sCNT}, {sCNT}, 1', f'    s_cmp_gt_u32 {sCNT}, {SPIN_MAX}', '    s_cbranch_scc1 L_end',
                          f'    s_load_dword s{POLL}, s[34:35], 8 glc', '    s_waitcnt lgkmcnt(0)', f'    s_cmp_eq_u32 s{POLL}, 0x01010101', f'    s_cbranch_scc0 {lp}', f'    s_branch {ok}']
            self.stamp(s, 'exp:b1')
        self.exp_phase(s, M_MAXB, M_LB, [], hooks, o['wdB'])
        if o['prioB']: s.i('s_setprio 0')
        self.stamp(s, 'expB')
        chk()
        for it in hooks.get(13, []): s.emit(it)
        s.i('s_barrier')
        def clr():
            for r in range(4): s.i(f'v_mov_b32 v{240+r}, -1')
            s.i(f's_mul_i32 {sT1}, {sL}, 12288\ns_mul_i32 {sT0}, {sW}, 3072\ns_add_u32 {sT1}, {sT1}, {sT0}\ns_add_u32 {sT1}, {sT1}, {WS_S2}')
            s.i(f's_cmp_eq_u32 {sW}, {sHKV}\ns_cselect_b32 {sT1}, 0x10000000, {sT1}')
            for rt in range(3): s.i(f'buffer_store_dwordx4 v[240:243], v1, {WS}, {sT1} offen offset:{rt*1024} sc1', 'clr2')
        if o['clrB'] == 1: clr()
        for it in hooks.get(14, []): s.emit(it)
        PK = lambda k: PARK[k % NP]
        s.i(f's_and_b32 {sT0}, {sW}, 1\ns_mul_i32 {sT0}, {sT0}, 6144\ns_add_u32 {sT0}, {sT0}, {L_O}\nv_add_u32 v11, {sT0}, v1\nv_add_u32 v12, 49152, v11')
        s.i(f'v_add_u32 v14, {sRING}, v1\ns_xor_b32 {sT0}, {sW}, 1\ns_mul_i32 {sT0}, {sT0}, 12288')
        if L_V: s.i(f's_add_u32 {sT0}, {sT0}, {L_V}')
        s.i(f'v_add_u32 v13, {sT0}, v1')
        NP0 = o['np0']
        for k in range(len(wp), NP0):
            s.wait(vm=f'w{k}')
            self.stamp(s, f'pvb:w{k}')
            for it in self.w_reads(PK(k), k % RW, f'wr{k}'): s.emit(it)
            s.wait(lg=f'wr{k}')
            for it in self.w_dma(WO, k % RW, wo_off(k+RW), f'w{k+RW}'): s.emit(it)
            if o['clrB'] >= 2 and k == o['clrB'] - 2: clr()
            if o['clrB'] and k == min(NP0 - 1, o['clrB'] + 2):
                s.wait(vm='clr2'); self.flag(s, 1, 'cf', always_slow=True)
        self.stamp(s, 'parked')
        OF = [224, 236]
        def o_reads(k): return [(f'ds_read_b128 {vr(OF[k&1]+4*rt,4)}, v{11+(k>>3)} offset:{((k>>1)&3)*12288 + (k&1)*3072 + rt*1024}', f'o{k}') for rt in range(3)]
        s.i('s_barrier')
        self.stamp(s, 'bO0')
        for it in o_reads(0): s.emit(it)
        late = dict(zip(self.ints('late') if 'late' in o else {10: [1, 2, 3, 7, 8, 9], 9: [0, 1, 2, 6, 7, 8, 11], 8: [0, 1, 2, 5, 6, 7, 10, 11], 7: [0, 1, 2, 5, 6, 7, 10, 11, 12]}[NP0], range(NP0, 16)))
        assert all(k >= kk - NP + 1 and k < kk for k, kk in late.items()) and len(late) == 16 - NP0
        for k in range(16):
            s.wait(lg=f'o{k}')
            if k % 2 == 0: self.stamp(s, f'p3:{k}')
            if k >= NP0: s.wait(lg=f'wr{k}')
            mm = self.g_mfmas(PK(k), OF[k&1], k == 0, (2, 3, 0, 1) if k == 15 else (0, 1, 2, 3))
            fill = []
            bar = k + 1 < 16 and (k+1) % 2 == 0 and (k+1)//2 in self.OBARS
            if k + 1 < 16 and not bar: fill += o_reads(k+1)
            if k - 1 in late and late[k-1] + RW < 16:
                kk = late[k-1]
                fill += [{'lg': f'wr{kk}'}] + self.w_dma(WO, kk % RW, wo_off(kk+RW), f'w{kk+RW}')
            if k in late:
                kk = late[k]
                fill += [{'vm': f'w{kk}'}] + self.w_reads(PK(kk), kk % RW, f'wr{kk}')
            if bar:
                s.weave(mm[:5], [], per=2)
                s.i('s_barrier')
                s.weave(mm[5:], o_reads(k+1) + fill, per=3)
            else:
                s.weave(mm, fill, per=2)
        self.stamp(s, 'P3')
        for n in range(6): s.i(f'ds_write_b128 v14, {vr(40+4*n,4)} offset:{n*1024}', 'pw')
        s.i('s_waitcnt lgkmcnt(0)\ns_barrier')
        for n in range(6): s.i(f'ds_read_b128 {vr(64+4*n,4)}, v13 offset:{n*1024}', f'pr{n}')
        s.i(f's_cmp_eq_u32 {sW}, {sHKV}\ns_cbranch_scc1 L_recv')
        r = s.fork('B')
        s.i(f's_lshl2_add_u32 {sT1}, {sB}, {sW}\ns_lshl3_add_u32 {sT1}, {sT1}, {sJ}\ns_mul_i32 {sT1}, {sT1}, 12288\ns_mul_i32 {sT2}, {sHKV}, 3072\ns_add_u32 {sT1}, {sT1}, {sT2}\ns_add_u32 {sT1}, {sT1}, {WS_S2}')
        for n in range(6):
            s.wait(lg=f'pr{n}')
            a = 16 + 4*n; d = 88 + 4*(n % 3) + 2*(n//3)
            for e in range(4): s.i(f'v_add_f32 v{a+e}, v{a+e}, v{64+4*n+e}')
            s.i(f'v_cvt_pk_bf16_f32 v{d}, v{a}, v{a+1}\nv_cvt_pk_bf16_f32 v{d+1}, v{a+2}, v{a+3}')
            s.i(f'v_min_u32 v{d}, -2, v{d}\nv_min_u32 v{d+1}, -2, v{d+1}')
            if n >= 3: s.i(f'buffer_store_dwordx4 {vr(88+4*(n-3),4)}, v1, {WS}, {sT1} offen offset:{(n-3)*1024} sc1', 's2')
        saved = list(self.stamps['B'])
        self.stamp(s, 'sent'); self.stamp(s, 'got'); self.stamp(s, 'end')
        self.dump_stamps(s)
        s.i('s_endpgm')
        self.stamps['B'] = saved
        r.i('L_recv:')
        r.i(f's_mul_i32 {sT1}, {sL}, 12288\ns_add_u32 {sT1}, {sT1}, {WS_S2}')
        for n in range(1, 4):
            r.i(f's_add_u32 {sT0}, {sHKV}, {n}\ns_and_b32 {sT0}, {sT0}, 3\ns_mul_i32 {sT0}, {sT0}, 3072\ns_add_u32 s{TAB+n}, {sT0}, {sT1}')
        for n in range(6):
            r.wait(lg=f'pr{n}')
            for e in range(4): r.i(f'v_add_f32 v{16+4*n+e}, v{16+4*n+e}, v{64+4*n+e}')
        self.stamp(r, 'sent')
        r.i('v_and_b32 v2, 15, v0\nv_lshlrev_b32 v2, 11, v2\nv_bfe_u32 v3, v0, 4, 1\nv_lshl_or_b32 v2, v3, 5, v2\nv_lshrrev_b32 v3, 5, v0\nv_lshl_or_b32 v2, v3, 4, v2')
        r.i(f's_mul_i32 s{TAB+4}, {sB}, {48*2048}\ns_lshl_b32 {sT0}, {sJ}, 8\ns_add_u32 s{TAB+4}, s{TAB+4}, {sT0}\ns_lshl_b32 {sT0}, {sHKV}, 6\ns_add_u32 s{TAB+4}, s{TAB+4}, {sT0}')
        r.i(f's_add_u32 s{TAB+5}, s{TAB+4}, {16*2048}\ns_add_u32 s{TAB+6}, s{TAB+4}, {32*2048}')
        lp = self.spin_head(r, 's2')
        for n in range(3):
            for rt in range(3): r.i(f'buffer_load_dwordx4 {vr(64+12*n+4*rt,4)}, v1, {WS}, s{TAB+1+n} offen offset:{rt*1024} sc1', 'in')
        r.i('s_waitcnt vmcnt(0)')
        r.i('v_max3_u32 v4, v64, v65, v66\nv_max3_u32 v5, v67, v68, v69')
        for n in range(70, 100, 4):
            r.i(f'v_max3_u32 v4, v4, v{n}, v{n+1}')
            if n + 3 < 100: r.i(f'v_max3_u32 v5, v5, v{n+2}, v{n+3}')
        r.i(f'v_max_u32 v4, v4, v5\nv_cmp_eq_u32 vcc, -1, v4\ns_nop 4\ns_cbranch_vccnz {lp}')
        self.stamp(r, 'got')
        for rt in range(3):
            for n in range(3):
                for tt in range(2):
                    a = acc(tt, rt); d = 64 + 12*n + 4*rt + 2*tt
                    for h in range(2):
                        r.i(f'v_lshlrev_b32 v4, 16, v{d+h}\nv_and_b32 v5, 0xffff0000, v{d+h}')
                        r.i(f'v_add_f32 v{a+2*h}, v{a+2*h}, v4\nv_add_f32 v{a+2*h+1}, v{a+2*h+1}, v5')
            oo = 100 + 4*rt
            for tt in range(2):
                a = acc(tt, rt)
                r.i(f'v_cvt_pk_bf16_f32 v{oo+2*tt}, v{a}, v{a+1}\nv_cvt_pk_bf16_f32 v{oo+2*tt+1}, v{a+2}, v{a+3}')
            r.i(f'v_permlane16_swap_b32 v{oo}, v{oo+2}\nv_permlane16_swap_b32 v{oo+1}, v{oo+3}')
            r.i(f'buffer_store_dwordx4 {vr(oo,4)}, v2, {OUT}, s{TAB+4+rt} offen {o["outsc"]}', 'out')
        if self.diag: r.i('s_waitcnt vmcnt(0)')
        self.stamp(r, 'end')
        self.dump_stamps(r)
        if self.opt.get('amp'):
            r.i('s_waitcnt vmcnt(0) lgkmcnt(0)\ns_memrealtime s[74:75]\ns_sub_u32 s72, s72, s70\ns_min_u32 s72, s72, 10000\ns_mul_i32 s72, s72, 8\ns_waitcnt lgkmcnt(0)')
            r.i('L_amp:\ns_memrealtime s[76:77]\ns_waitcnt lgkmcnt(0)\ns_sub_u32 s76, s76, s74\ns_cmp_lt_u32 s76, s72\ns_cbranch_scc1 L_amp')
        r.i('L_end:\ns_endpgm')
        return r

    def build(self):
        p = self.prologue()
        a = p.fork('A'); b = p.fork('B')
        r = self.roleB(b)
        self.roleA(a)
        nb = lambda *ss: sum(1 for s in ss for x in s.out if x.op == 's_barrier')
        assert nb(a) + (0 if self.diag else 1) == nb(b), (nb(a), nb(b))
        o = [HDR, '; @launch grid=(256,1,1) block=(512,1,1) lds=163840',
             '.amdgcn_target "amdgcn-amd-amdhsa--gfx950"', '.text', f'.globl {NAME}', '.p2align 8', f'.type {NAME},@function', f'{NAME}:',
             p.text(), b.text(), r.text(), a.text(), '\n'.join(self.cold), 'L_codeend:', '    s_endpgm',
             f'''.section .rodata,"a"
.p2align 6
.amdhsa_kernel {NAME}
  .amdhsa_next_free_vgpr 256
  .amdhsa_next_free_sgpr 102
  .amdhsa_accum_offset 256
  .amdhsa_group_segment_fixed_size 0
  .amdhsa_kernarg_size 64
  .amdhsa_user_sgpr_count 2
  .amdhsa_user_sgpr_kernarg_segment_ptr 1
  .amdhsa_system_sgpr_workgroup_id_x 1
.end_amdhsa_kernel''']
        self.nops = (a.nops, b.nops, r.nops)
        return '\n'.join(o) + '\n'

if __name__ == '__main__':
    opts = dict(kv.split('=') for kv in sys.argv[1:] if '=' in kv)
    opts = {k: (int(v) if v.lstrip('-').isdigit() else v) for k, v in opts.items()}
    g = Gen(diag='diag' in sys.argv, fast='slow' not in sys.argv, **opts)
    t = g.build()
    out = [a for a in sys.argv[1:] if a.endswith('.s')]
    open(out[0] if out else 'k.s', 'w').write(t)
    print('nops', g.nops, 'lines', t.count('\n'), g.stamps)
```

```python
import math, struct, sys
from asmlib import Stream, Ins

NAME = 'standalone__gqa_block_cached__near_ridge_kernel'
HDR = open('standalone__gqa_block_cached__near_ridge.s.ref').read().split('; Override launch')[0].rstrip()

WS_FLAGS, WS_OFL, WS_X, WS_S2, WS_STAMP = 0, 0x8000, 0x10000, 0x800000, 0x1000000
SL = [0, 45056, 90112]; SLW = 12288
L_Q = 135168; L_Q2 = 90112
L_V = 0; L_MISC = 49152; L_SPARE = 53248
L_PB = 65536; L_PA = 114688
L_O = 65536
M_MAXA, M_MAXB, M_LA, M_LB, M_FLG = 0, 768, 1536, 2304, 3072
X, K, V, WQ, WO, OUT, WS = 's[4:7]', 's[8:11]', 's[12:15]', 's[16:19]', 's[20:23]', 's[24:27]', 's[28:31]'
sW, sHKV, sBH, sBL, sJ, sB, sG, sL = 's36', 's37', 's38', 's39', 's40', 's41', 's42', 's43'
sRING, sC, sCNT, sFAST = 's44', 's45', 's46', 's47'
TAB = 48
sT0, sT1, sT2, sT3 = 's56', 's57', 's58', 's59'
POLL = 60
sFLG = 's[68:69]'
STAMP0 = 70
SPIN_MAX = 1 << 20
CEXP = struct.unpack('<I', struct.pack('<f', math.log2(math.e) / math.sqrt(128)))[0]

def vr(a, n): return f'v[{a}:{a+n-1}]'
def mfma(d, a, b, c=None):
    return f'v_mfma_f32_16x16x32_bf16 {vr(d,4)}, {vr(a,4)}, {vr(b,4)}, {vr(c,4) if c is not None else 0}'
ACC = 16
def acc(t, rt): return ACC + (t*3 + rt)*4
PARK = [160, 176, 96, 112, 64, 80, 128, 144, 192, 208]
ORD_A = [(0, 0), (0, 1), (0, 2), (0, 3), (1, 0), (1, 1), (1, 2), (1, 3)]
ORD_B = [(0, 0), (1, 0), (0, 1), (0, 2), (0, 3), (1, 1), (1, 2), (1, 3)]
ORD_C = [(0, 0), (0, 1), (1, 0), (0, 2), (0, 3), (1, 1), (1, 2), (1, 3)]
ORDS = dict(A=ORD_A, B=ORD_B, C=ORD_C)

DEFAULTS = dict(wqord='A', woord='A', p1bar=12, vmid=1, vb0=24, vbs=3, cfm=90, poisonm=-1, clrB=1,
                pk=1, ck=5, v0n=3, two=1, pfq=94, v3g=8, tl=4, opoll='v', prioB=1, slowflag=0, touch=1, k1early=0,
                v1g=2, v2g=6, v2m=6, poearly=1, pf='7', wog='14,14,14', wdA=2, wdB=6, wb=1, d2=1, chain=1, pfbal=1, vstage=3, outsc='sc1')
NS = 8
slot = lambda si: si % 3
TORD = (2, 1, 3, 0)
VA = [(k*8192, k*8192 + 4096) for k in range(6)] + [(53248 + k*8192, 57344 + k*8192) for k in range(4)] + [(102400, 106496), (86016, 110592)] + \
     [(53248 + k*8192, 57344 + k*8192) for k in range(3)] + [(114688, 118784)]
def Vreg(k): return 64 + 8*k

class Gen:
    def __init__(self, diag=False, fast=True, **opt):
        self.diag = diag; self.fast = fast
        self.opt = dict(DEFAULTS); self.opt.update(opt)
        self.nlab = 0
        self.cold = []
        self.stamps = {'A': [], 'B': [], 'P': []}
        self.steps = [('w', t) for t in range(8)] + [('k', t) for t in range(4)]

    def ints(self, k): return [int(x) for x in str(self.opt[k]).split(',') if x != '']

    def lab(self, p):
        self.nlab += 1
        return f'L_{p}_{self.nlab}'

    def raw(self, s, text): s.out.append(Ins(text))

    def stamp(self, s, name):
        amp = self.opt.get('amp')
        if amp and s.name == 'A' and name == amp: s.i('s_memrealtime s[72:73]')
        if not self.diag: return
        foc = self.opt.get('focus')
        if ':' in name:
            if name.split(':')[0] != foc: return
        elif foc and name not in ('entry',) and name not in self.opt.get('keep', '').split(','): return
        l = self.stamps[s.name]; n = len(l); l.append(name)
        assert n < 16, l
        s.i(f'{"s_memtime" if (name.startswith("cyc") or self.opt.get("cyc")) else "s_memrealtime"} s[{STAMP0+2*n}:{STAMP0+2*n+1}]')

    def dump_stamps(self, s):
        if not self.diag: return
        n = len(self.stamps[s.name])
        s.i('s_waitcnt vmcnt(0) lgkmcnt(0)')
        s.i(f's_lshl_b32 {sT0}, s2, 3\ns_add_u32 {sT0}, {sT0}, {sW}')
        if s.name == 'B': s.i(f's_add_u32 {sT0}, {sT0}, 4')
        s.i(f's_lshl_b32 {sT0}, {sT0}, 7\ns_add_u32 {sT0}, {sT0}, {WS_STAMP}\nv_mov_b32 v1, 0')
        for k in range(n):
            s.i(f'v_mov_b32 v2, s{STAMP0+2*k}\nbuffer_store_dword v2, v1, {WS}, {sT0} offen offset:{4*k}\ns_waitcnt vmcnt(0)')

    def spin_head(self, s, p):
        lp = self.lab(p)
        s.i(f's_mov_b32 {sCNT}, 0\n{lp}:')
        s.i(f's_add_u32 {sCNT}, {sCNT}, 1\ns_cmp_gt_u32 {sCNT}, {SPIN_MAX}\ns_cbranch_scc1 L_end')
        return lp

    def and8(self, s):
        s.i(f's_and_b64 s[{POLL}:{POLL+1}], s[{POLL}:{POLL+1}], s[{POLL+2}:{POLL+3}]')
        s.i(f's_and_b64 s[{POLL+4}:{POLL+5}], s[{POLL+4}:{POLL+5}], s[{POLL+6}:{POLL+7}]')
        s.i(f's_and_b64 s[{POLL}:{POLL+1}], s[{POLL}:{POLL+1}], s[{POLL+4}:{POLL+5}]')
        s.i(f's_and_b32 s{POLL}, s{POLL}, s{POLL+1}')

    def poll(self, s, mode, sOFF, off, n, want, mask=None):
        if mode == 's':
            s.i(f's_add_u32 s34, s28, {sOFF}\ns_addc_u32 s35, s29, 0')
            s.i('s_waitcnt lgkmcnt(0)')
            lp = self.spin_head(s, 'poll')
            if n == 1: s.i(f's_load_dword s{POLL}, s[34:35], {off} glc')
            else: s.i(f's_load_dwordx{n} s[{POLL}:{POLL+n-1}], s[34:35], {off} glc')
            s.i('s_waitcnt lgkmcnt(0)')
            if n == 8: self.and8(s)
            if mask is not None: s.i(f's_and_b32 s{POLL}, s{POLL}, {mask}')
            s.i(f's_cmp_eq_u32 s{POLL}, {want}\ns_cbranch_scc0 {lp}')
        else:
            s.i(f'v_and_b32 v253, {n-1}, v0\nv_lshlrev_b32 v253, 2, v253')
            lp = self.spin_head(s, 'poll')
            s.i(f'buffer_load_dword v252, v253, {WS}, {sOFF} offen offset:{off} sc1', 'poll')
            s.i('s_waitcnt vmcnt(0)')
            if mask is not None: s.i(f'v_and_b32 v252, {mask}, v252')
            s.i(f'v_cmp_ne_u32 vcc, {want}, v252\ns_nop 4\ns_cbranch_vccnz {lp}')

    def xstores(self, s, items, tag):
        isst = lambda t: t.startswith('buffer')
        if not self.fast:
            for t in items: s.i(t + (' sc1' if isst(t) else ''), tag)
            return
        a, b = self.lab('slow'), self.lab('join')
        s.i(f's_cmp_eq_u32 {sFAST}, 0\ns_cbranch_scc1 {a}')
        for t in items: s.i(t, tag)
        s.i(f'{b}:')
        self.cold += [f'{a}:'] + ['    ' + t + (' sc1' if isst(t) else '') for t in items] + ['    s_nop 0', f'    s_branch {b}']

    def flag_setup(self, s):
        s.i('v_lshlrev_b32 v254, 25, v0\nv_min_u32 v254, 0x1000000, v254\nv_lshlrev_b32 v254, 4, v254\nv_mov_b32 v255, 1')
        s.i(f's_lshl_b32 s68, {sL}, 7\ns_add_u32 s68, s68, {sW}')
        s.i(f's_lshl2_add_u32 s69, {sG}, {sW}\ns_lshl_b32 s69, s69, 7\ns_lshl2_add_u32 s69, {sJ}, s69\ns_add_u32 s69, s69, {WS_OFL}')

    def flag(self, s, kind, tag, always_slow=False):
        st = f'buffer_store_byte v255, v254, {WS}, ' + (f's69 offen' if kind == 'o' else f's68 offen offset:{kind*4}')
        if always_slow or self.opt['slowflag']: s.i(st + ' sc1', tag)
        else: self.xstores(s, [st], tag)

    def fast_test(self, s, part):
        if not self.fast: return
        if self.opt.get('nodbg'):
            s.i(f's_mov_b32 {sFAST}, 1'); return
        if part == 0:
            s.i(f's_lshl_b32 {sT0}, {sG}, 3\ns_add_u32 s34, s32, {sT0}\ns_addc_u32 s35, s33, 0\ns_load_dwordx2 s[{POLL}:{POLL+1}], s[34:35], 0')
            s.i(f's_getreg_b32 {sT0}, hwreg(HW_REG_XCC_ID)\ns_and_b32 {sT0}, {sT0}, 15\ns_or_b32 {sT0}, {sT0}, 0x80\ns_mul_i32 s62, {sT0}, 0x01010101\ns_mov_b32 s63, s62')
        else:
            s.i(f's_waitcnt lgkmcnt(0)\ns_cmp_eq_u64 s[{POLL}:{POLL+1}], s[62:63]\ns_cselect_b32 {sFAST}, 1, 0')

    def xb_off(self, s, dst, partner):
        if partner: s.i(f's_xor_b32 {dst}, {sL}, 1\ns_lshl2_add_u32 {dst}, {dst}, {sW}')
        else: s.i(f's_lshl2_add_u32 {dst}, {sL}, {sW}')
        s.i(f's_lshl_b32 {dst}, {dst}, 12\ns_add_u32 {dst}, {dst}, {WS_X}')

    def w_dma(self, srd, slot, soff, tag, ring=sRING, vo=3):
        it = [f's_add_u32 m0, {ring}, {slot*4096}']
        if isinstance(soff, tuple):
            it.append(f's_add_u32 {sT3}, {soff[0]}, {soff[1]}'); soff = sT3
        for i in range(4):
            it.append((f'buffer_load_dwordx4 v{vo+i}, {srd}, {soff} offen offset:{i*1024} lds', tag))
        return it

    def w_reads(self, dst, slot, tag, ad=7):
        it = []
        for t in range(4):
            it.append((f'ds_read_b64_tr_b16 {vr(dst+4*t,2)}, v{ad+t} offset:{slot*4096}', tag))
            it.append((f'ds_read_b64_tr_b16 {vr(dst+4*t+2,2)}, v{ad+t} offset:{slot*4096+2048}', tag))
        return it

    def g_mfmas(self, wreg, breg, first, order=(0, 1, 2, 3)):
        return [mfma(acc(t, rt), wreg+4*t, breg+4*rt, None if first else acc(t, rt)) for n, t in enumerate(order) for rt in (range(3) if n % 2 == 0 or not self.opt['chain'] else (2, 1, 0))]

    def stream_setup(self, s, shift, step):
        s.i(f's_mul_i32 {sRING}, {sW}, 12288')
        if L_V: s.i(f's_add_u32 {sRING}, {sRING}, {L_V}')
        s.i(f'v_lshrrev_b32 v252, 2, v0\nv_bfe_u32 v253, v0, 3, 2')
        s.i(f's_and_b32 {sT0}, {sW}, 1\ns_lshl_b32 {sT0}, {sT0}, 1')
        s.i(f'v_xor_b32 v253, {sT0}, v253\nv_lshlrev_b32 v253, 5, v253\nv_lshl_or_b32 v252, v252, 7, v253')
        s.i(f'v_and_b32 v253, 3, v0\nv_lshl_or_b32 v252, v253, 3, v252')
        for t in range(4):
            s.i(f'v_xor_b32 v253, {t<<5}, v252\nv_add_u32 v{7+t}, {sRING}, v253')
        s.i(f'v_lshrrev_b32 v252, 3, v0\nv_and_b32 v252, 6, v252\nv_xor_b32 v252, v252, v0\nv_and_b32 v252, 7, v252\nv_lshlrev_b32 v252, 4, v252')
        s.i(f'v_lshrrev_b32 v253, 3, v0\nv_lshl_or_b32 v3, v253, {shift}, v252')
        for i in range(1, 4): s.i(f'v_add_u32 v{3+i}, {step*i}, v3')

    def ord_t(self, s, dst, o):
        flip, rot = o
        if rot: s.i(f's_add_u32 {dst}, {sBL}, {rot}\ns_and_b32 {dst}, {dst}, 3')
        src = dst if rot else sBL
        if flip: s.i(f's_xor_b32 {sT1}, {sBH}, 1\ns_lshl2_add_u32 {dst}, {sT1}, {src}')
        else: s.i(f's_lshl2_add_u32 {dst}, {sBH}, {src}')

    def k_addr(self, s):
        s.i('v_bfe_u32 v252, v0, 4, 1\nv_lshrrev_b32 v253, 5, v0\nv_lshl_or_b32 v252, v252, 1, v253\nv_xor_b32 v252, v252, v0\nv_and_b32 v252, 15, v252\nv_lshlrev_b32 v252, 4, v252')
        s.i(f'v_and_b32 v253, 15, v0\nv_lshl_or_b32 v252, v253, 8, v252\ns_lshl_b32 {sT0}, {sW}, 13\nv_add_u32 v2, {sT0}, v252')

    k3alt = False
    def Kreg(self, t, kt, u):
        if t == 3 and self.k3alt: return [88, 92, 120, 124, 216, 220, 224, 228][kt*4 + u]
        return 64 + 32*t + (kt*4 + u)*4
    def Sreg(self, t, kt, rt): return (192 if t == 0 else 64 + 32*(t-1)) + (kt*3 + rt)*4
    def Qreg(self, u, rt): return 16 + (u*3 + rt)*4
    MX, MC, LACC, ONES, TMP = 232, 235, 216, 228, 238

    def k_reads(self, t, base='v2'):
        sl = slot(self.steps.index(('k', t)))
        it = [f'v_add_u32 v11, {SL[sl] + SLW}, {base}'] + [f'v_xor_b32 v{11+u}, {u<<6}, v11' for u in range(1, 4)]
        return it + [(f'ds_read_b128 {vr(self.Kreg(t,kt,u),4)}, v{11+u} offset:{kt*4096}', f'k{t}') for u in range(4) for kt in range(2)]

    def qk_mfmas(self, t, tilemajor=False, chain=True):
        idx = [(u, kt, rt) for u in range(4) for kt in range(2) for rt in range(3)]
        if tilemajor: idx = [(u, kt, rt) for kt in range(2) for u in range(4) for rt in range(3)]
        if chain and self.opt['chain']:
            idx = [(u if (kt*3 + rt) % 2 == 0 else 3 - u, kt, rt) for kt in range(2) for rt in range(3) for u in range(4)]
            return [mfma(self.Sreg(t,kt,rt), self.Kreg(t,kt,u), self.Qreg(u,rt), None if n % 4 == 0 else self.Sreg(t,kt,rt)) for n, (u, kt, rt) in enumerate(idx)]
        return [mfma(self.Sreg(t,kt,rt), self.Kreg(t,kt,u), self.Qreg(u,rt), None if u == 0 else self.Sreg(t,kt,rt)) for u, kt, rt in idx]

    def max_ops(self, t, kts=(0, 1)):
        it = []
        for kt in kts:
            for rt in range(3):
                r = self.Sreg(t, kt, rt); m = self.MX + rt
                if t == 0 and kt == 0:
                    it.append(f'v_max3_f32 v{m}, v{r}, v{r+1}, v{r+2}'); it.append(f'v_max_f32 v{m}, v{m}, v{r+3}')
                else:
                    it.append(f'v_max3_f32 v{m}, v{m}, v{r}, v{r+1}'); it.append(f'v_max3_f32 v{m}, v{m}, v{r+2}, v{r+3}')
        return it

    def qk_last(self, s, extra, M=lambda x: x):
        mm = [M(x) for x in self.qk_mfmas(3, True)]
        s.weave(mm[:15], self.max_ops(2), start=2)
        s.weave(mm[15:], self.max_ops(3, (0,)) + extra)
        for x in self.max_ops(3, (1,)): s.i(x)

    def max_publish(self, s, moff):
        T = self.TMP
        for sw in ('v_permlane32_swap_b32', 'v_permlane16_swap_b32'):
            for rt in range(3): s.i(f'v_mov_b32 v{T+rt}, v{self.MX+rt}')
            for rt in range(3): s.i(f'{sw} v{self.MX+rt}, v{T+rt}')
            for rt in range(3): s.i(f'v_max_f32 v{self.MX+rt}, v{self.MX+rt}, v{T+rt}')
        self.publish(s, [self.MX + rt for rt in range(3)], moff)

    def publish(self, s, r, off):
        s.i(f's_mov_b64 exec, 0xffff\nv_mov_b32 v{r[2]}, v{r[0]}\ns_mov_b32 exec_lo, 0xffff0000\nv_mov_b32 v{r[2]}, v{r[1]}\ns_mov_b64 exec, -1')
        s.i(f'ds_write_b32 v250, v{r[2]} offset:{off}', 'pub')

    def misc_addr(self, s):
        s.i(f'v_and_b32 v251, 15, v0\nv_lshlrev_b32 v251, 4, v251\nv_add_u32 v251, {L_MISC}, v251')
        s.i(f'v_lshrrev_b32 v250, 4, v0\nv_min_u32 v250, 2, v250\nv_lshlrev_b32 v250, 8, v250')
        s.i(f's_lshl_b32 {sT0}, {sW}, 2\nv_add3_u32 v250, {sT0}, v251, v250')

    def exp_setup(self, pbase):
        return [f's_mul_i32 {sT0}, {sW}, 3072', f's_add_u32 {sT0}, {sT0}, {pbase}', f'v_add_u32 v15, {sT0}, v1']

    def exp_phase(self, s, moff, loff, first, hooks, wd=2):
        T = self.TMP
        for rt in range(3): s.i(f'ds_read_b128 {vr(T+4*rt,4)}, v251 offset:{moff + rt*256}', f'mxr{rt}')
        for r in range(4): s.i(f'v_mov_b32 v{self.ONES+r}, 0x3f803f80')
        for it in first: s.emit(it)
        for rt in range(3):
            s.wait(lg=f'mxr{rt}')
            r = T + 4*rt
            s.i(f'v_max3_f32 v{r}, v{r}, v{r+1}, v{r+2}\nv_max_f32 v{r}, v{r}, v{r+3}\nv_mul_f32 v{self.MC+rt}, {sC}, v{r}')
        groups = [(t, rt) for t in TORD for rt in range(3)]
        def fm(t, rt): return [f'v_fma_f32 v{r}, v{r}, {sC}, -v{self.MC+rt}' for kt in range(2) for r in range(self.Sreg(t,kt,rt), self.Sreg(t,kt,rt)+4)]
        def ex(t, rt): return [f'v_exp_f32 v{r}, v{r}' for kt in range(2) for r in range(self.Sreg(t,kt,rt), self.Sreg(t,kt,rt)+4)]
        def cv(t, rt):
            a, b = self.Sreg(t,0,rt), self.Sreg(t,1,rt)
            return [f'v_cvt_pk_bf16_f32 v{a}, v{a}, v{a+1}', f'v_cvt_pk_bf16_f32 v{a+1}, v{a+2}, v{a+3}',
                    f'v_cvt_pk_bf16_f32 v{a+2}, v{b}, v{b+1}', f'v_cvt_pk_bf16_f32 v{a+3}, v{b+2}, v{b+3}']
        def out(t, rt):
            a = self.Sreg(t,0,rt)
            return [(f'ds_write_b128 v15, {vr(a,4)} offset:{t*12288 + rt*1024}', 'pw'),
                    mfma(self.LACC+4*rt, self.ONES, a, None if t == TORD[0] else self.LACC+4*rt)]
        wq_ = []; nw = 0
        for x in fm(*groups[0]): s.i(x)
        for n, g in enumerate(groups):
            if n % 3 == 0: self.stamp(s, f'exp:{n}')
            for it in hooks.get(('pre', n), []): s.emit(it)
            e = ex(*g)
            nf = fm(*groups[n+1]) if n+1 < len(groups) else []
            pc = cv(*groups[n-1]) if n >= 1 else []
            po = []
            if n >= 2: po.append(out(*groups[n-2])[1]); wq_.append(out(*groups[n-2])[0])
            if n >= wd:
                k = min(len(wq_), -(-(10 - nw) // (12 - n)) if wd > 2 else 1)
                po = wq_[:1] + po; nf = nf[:3] + wq_[1:2][:k-1] + nf[3:6] + wq_[2:k] + nf[6:]
                del wq_[:k]; nw += k
            rest = po + pc + nf
            hk = hooks.get(n, [])
            k = 0; h = 0
            for q in range(0, 8, 2):
                s.i(e[q]); s.i(e[q+1])
                tgt = (len(rest)*(q+2) + 7)//8
                while k < tgt: s.emit(rest[k]); k += 1
                tgt = (len(hk)*(q+2) + 7)//8
                while h < tgt: s.emit(hk[h]); h += 1
        assert not wq_
        for x in out(*groups[-2]): s.emit(x)
        for x in cv(*groups[-1]): s.i(x)
        for x in out(*groups[-1]): s.emit(x)
        for it in hooks.get(12, []): s.emit(it)
        self.publish(s, [self.LACC + 4*rt for rt in range(3)], loff)
        self.stamp(s, 'exp:end')

    def kv_table(self, s, TB):
        sG = 0 if self.opt.get('fake') else globals()['sG']
        s.i(f's_lshl_b32 {sT2}, {sG}, 18\ns_and_b32 {sT0}, {sJ}, 1\ns_lshl_b32 {sT0}, {sT0}, 17\ns_add_u32 {sT2}, {sT2}, {sT0}')
        for t, d in TB.items():
            s.i(f's_lshr_b32 {sT0}, {sJ}, 1\ns_add_u32 {sT0}, {sT0}, {t}\ns_and_b32 {sT0}, {sT0}, 3\ns_lshl_b32 {sT0}, {sT0}, 15\ns_add_u32 {d}, {sT0}, {sT2}')

    def v_dma(self, k, TB, vo, tag):
        it = []
        for h in range(2):
            it += [f's_add_u32 m0, s3, {VA[k][h]}', f's_add_u32 {sT3}, {TB[k >> 2]}, {(k & 3)*8192 + h*4096}',
                   (f'buffer_load_dwordx4 {vo}, {V}, {sT3} offen lds', tag)]
        return it

    def lds_wait(self, s, off, bit, T=240):
        lp = self.spin_head(s, 'lw')
        s.i(f'ds_read_b128 {vr(T,4)}, v251 offset:{off}', 'fr')
        s.i(f's_waitcnt lgkmcnt(0)\nv_and_b32 v{T}, v{T}, v{T+1}\nv_and_b32 v{T+2}, v{T+2}, v{T+3}\nv_and_b32 v{T}, v{T}, v{T+2}\nv_readfirstlane_b32 {sT0}, v{T}\ns_bitcmp1_b32 {sT0}, {bit}\ns_cbranch_scc0 {lp}')

    def prologue(self):
        s = Stream('P')
        if self.opt.get('amp'): s.i('s_memrealtime s[70:71]')
        self.stamp(s, 'entry')
        s.i('s_cmp_ge_u32 s2, 256\ns_cbranch_scc1 L_end')
        for n, d in [(0, 4), (3, 16), (1, 8), (2, 12), (4, 20), (5, 24), (6, 32), (7, 28)]:
            s.i(f's_load_dwordx2 s[{d}:{d+1}], s[0:1], {8*n}')
        s.i('v_lshrrev_b32 v1, 6, v0\nv_and_b32 v0, 63, v0\ns_mov_b32 s7, 0x20000')
        s.i('v_readfirstlane_b32 s3, v1\nv_lshlrev_b32 v1, 4, v0')
        s.i(f's_cmp_lg_u32 s3, 0\ns_cbranch_scc1 L_nopf')
        s.i(f's_getpc_b64 s[60:61]\nL_pcref:\ns_sub_u32 s60, s60, L_pcref-{NAME}\ns_subb_u32 s61, s61, 0\ns_mov_b32 s62, L_codeend-{NAME}\ns_mov_b32 s63, s7')
        s.i(f's_lshr_b32 {sT0}, s2, 3\ns_lshl_b32 {sT0}, {sT0}, 10')
        self.raw(s, f'buffer_load_dwordx4 v[240:243], v1, s[60:63], {sT0} offen')
        s.i('L_nopf:')
        s.i(f's_and_b32 {sHKV}, s2, 3\ns_bfe_u32 {sBH}, s2, 0x10002\ns_lshr_b32 {sBL}, s2, 6\ns_bfe_u32 {sJ}, s2, 0x30003')
        if self.opt.get('jxor'): s.i(f's_xor_b32 {sJ}, {sJ}, {self.opt["jxor"]}')
        if self.opt.get('swapmap'): s.i(f's_bfe_u32 {sBL}, s2, 0x20003\ns_lshr_b32 {sJ}, s2, 5')
        s.i(f's_lshl2_add_u32 {sB}, {sBH}, {sBL}\ns_lshl2_add_u32 {sG}, {sB}, {sHKV}\ns_lshl3_add_u32 {sL}, {sG}, {sJ}\ns_and_b32 {sW}, s3, 3')
        s.i('s_cmp_lt_u32 s3, 4\ns_cbranch_scc1 L_roleA')
        self.stamps['A'] = list(self.stamps['P']); self.stamps['B'] = list(self.stamps['P'])
        return s

    def srds(self, s, lst):
        for d, n in lst:
            s.i(f's_mov_b32 s{d+2}, {n}')
            if d != 4: s.i(f's_mov_b32 s{d+3}, s7')

    def roleA(self, s):
        o = self.opt
        s.i('L_roleA:')
        self.srds(s, [(12, 8<<20), (20, 8<<20), (24, 384*2048), (28, 256<<20)])
        s.i('s_waitcnt lgkmcnt(0)')
        skip = self.lab('noclr')
        s.i(f's_cmp_eq_u32 {sW}, 0\ns_cbranch_scc0 {skip}')
        s.i(f's_lshl_b32 {sT0}, {sG}, 9\ns_lshl2_add_u32 {sT0}, {sJ}, {sT0}\ns_add_u32 {sT0}, {sT0}, {WS_OFL}\ns_lshl_b32 {sT1}, {sL}, 7')
        s.i(f'v_lshlrev_b32 v3, 7, v0\nv_lshlrev_b32 v5, 2, v0\nv_mov_b32 v4, 0\ns_mov_b64 exec, 15')
        self.raw(s, f'buffer_store_dword v4, v3, {WS}, {sT0} offen sc1')
        self.raw(s, f'buffer_store_dword v4, v5, {WS}, {sT1} offen sc1')
        s.i('s_mov_b64 exec, -1')
        s.i(f's_getreg_b32 {sT0}, hwreg(HW_REG_XCC_ID)\ns_and_b32 {sT0}, {sT0}, 15\ns_or_b32 {sT0}, {sT0}, 0x80')
        s.i(f's_and_b32 {sT1}, {sL}, 3\ns_lshl_b32 {sT1}, {sT1}, 3\ns_lshl_b32 {sFAST}, {sT0}, {sT1}')
        s.i(f's_andn2_b32 {sT1}, {sL}, 3\ns_add_u32 s34, s32, {sT1}\ns_addc_u32 s35, s33, 0')
        s.i(f's_waitcnt vmcnt(0)')
        if not o.get('nodbg'): s.i(f's_atomic_or {sFAST}, s[34:35], 0')
        s.i(f'{skip}:')
        s.i('v_lshrrev_b32 v252, 4, v0\nv_xor_b32 v252, v252, v0\nv_and_b32 v252, 15, v252\nv_lshlrev_b32 v252, 4, v252\nv_and_b32 v253, 15, v0\nv_lshl_or_b32 v196, v253, 8, v252')
        for u in range(1, 4): s.i(f'v_xor_b32 v{196+u}, {u<<6}, v196')
        s.i(f'v_bfe_u32 v252, v0, 2, 3\ns_lshl_b32 {sT0}, {sW}, 1\nv_xor_b32 v252, {sT0}, v252\nv_lshlrev_b32 v252, 5, v252\nv_lshrrev_b32 v253, 2, v0\nv_lshl_or_b32 v252, v253, 8, v252')
        s.i(f'v_and_b32 v253, 3, v0\nv_lshl_or_b32 v200, v253, 3, v252\nv_xor_b32 v201, 32, v200')
        for sl in (1, 2):
            for n in range(6): s.i(f'v_add_u32 v{196+6*sl+n}, {SL[sl]}, v{196+n}')
        self.k_addr(s)
        s.i('v_mov_b32 v7, v200\nv_mov_b32 v8, v201\nv_add_u32 v9, 0x10000, v200\nv_add_u32 v10, 0x10000, v201')
        s.i(f'v_lshrrev_b32 v252, 4, v0\ns_lshl_b32 {sT0}, {sW}, 2\nv_add_u32 v252, {sT0}, v252\nv_lshlrev_b32 v253, 1, v252\nv_xor_b32 v253, v253, v0\nv_and_b32 v253, 15, v253\nv_lshlrev_b32 v253, 4, v253\nv_lshl_or_b32 v3, v252, 8, v253')
        VT = {3: f's{TAB+3}'}
        self.kv_table(s, VT)
        s.i(f's_lshl_b32 s3, {sW}, 10')
        s.i('v_and_b32 v4, 15, v0\nv_lshlrev_b32 v4, 4, v4')
        self.flag_setup(s)
        self.misc_addr(s)
        s.i(f's_mov_b32 {sC}, {CEXP:#x}')
        sXO, sXP = f's{TAB+4}', f's{TAB+5}'
        self.xb_off(s, sXO, False); self.xb_off(s, sXP, True)
        s.i(f's_mul_i32 {sT0}, {sW}, 3072\ns_add_u32 {sT0}, {sT0}, {L_Q}\nv_add_u32 v15, {sT0}, v1\nv_add_u32 v249, {L_Q}, v1')
        WB = [40, 96]; XB = [112, 136]
        def reads(n, sl):
            half = n & 1; A0 = 196 + 6*sl; it = []
            for ks in range(2):
                u = 2*half + ks
                it += [(f'ds_read_b128 {vr(XB[half]+12*ks+4*rt,4)}, v{A0+u} offset:{rt*4096}', f'r{n}_{ks}') for rt in range(3)]
                for tt in range(2):
                    for h in range(2):
                        it.append((f'ds_read_b64_tr_b16 {vr(WB[half]+8*ks+4*tt+2*h,2)}, v{A0+4+tt} offset:{SLW + u*8192 + h*4096}', f'r{n}_{ks}'))
            return it
        def mf(n):
            half = n & 1; it = []
            for ks in range(2):
                it.append({'lg': f'r{n}_{ks}'})
                it += [mfma(acc(tt, rt), WB[half]+8*ks+4*tt, XB[half]+12*ks+4*rt, None if (n == 0 and ks == 0) else acc(tt, rt)) for tt, rt in (P1O[::-1] if ks and o['chain'] else P1O)]
            return it
        P1O = [(0, 0), (0, 1), (0, 2), (1, 2), (1, 1), (1, 0)]
        pend = []
        for si, (kind, t) in enumerate(self.steps[:NS]):
            s.i('s_barrier')
            if si == 0: self.stamp(s, 'b0')
            self.stamp(s, f'p1:{si}')
            if True:
                s.weave(pend + ['s_nop 0'], reads(2*t, slot(si)), per=3); pend = []
                s.weave(mf(2*t), reads(2*t+1, slot(si)), start=1, per=2)
                m = mf(2*t+1)
                cut = len(m) if si == NS-1 else max(8, o['p1bar'] + 2)
                for it in m[:cut]: s.emit(it)
                pend = m[cut:]
            if si == NS-3: self.fast_test(s, 0)
            if si == NS-2: self.fast_test(s, 1)
        self.stamp(s, 'T1')
        for rt in range(3):
            d = 112 + 4*rt
            for tt in range(2):
                a = acc(tt, rt)
                s.i(f'v_cvt_pk_bf16_f32 v{d+2*tt}, v{a}, v{a+1}\nv_cvt_pk_bf16_f32 v{d+2*tt+1}, v{a+2}, v{a+3}')
        self.stamp(s, 'qk:cv')
        for rt in range(3):
            d = 112 + 4*rt
            s.i(f'v_permlane16_swap_b32 v{d}, v{d+2}\nv_permlane16_swap_b32 v{d+1}, v{d+3}')
        self.stamp(s, 'qk:sw')
        for rt in range(3): s.i(f'ds_write_b128 v15, {vr(112+4*rt,4)} offset:{rt*1024}', 'qw')
        self.stamp(s, 'qk:qw')
        self.xstores(s, [f'buffer_store_dwordx4 {vr(112+4*rt,4)}, v1, {WS}, {sXP} offen offset:{rt*1024}' for rt in range(3)], 'qs')
        s.i('s_waitcnt lgkmcnt(0)\ns_barrier')
        self.stamp(s, 'bq')
        for u in range(4):
            for rt in range(3): s.i(f'ds_read_b128 {vr(self.Qreg(u,rt),4)}, v249 offset:{(u*3+rt)*1024}', f'q')
        s.wait(vm='qs'); self.flag(s, 0, 'qf')
        self.stamp(s, 'x:' + 'qflag')
        s.wait(lg='q')
        held = []
        for t in range(4):
            kr = self.k_reads(t)
            for it in kr[:4]: s.emit(it)
            s.i('s_barrier')
            self.stamp(s, f'qk:b{t}')
            if t == 3: self.stamp(s, 'b11')
            s.weave(held + ['s_nop 0'], kr[4:], per=2)
            if t == 3: break
            s.wait(lg=f'k{t}')
            mm = self.qk_mfmas(t); cut = 24 - o.get('qhold', 6)
            s.weave(mm[:cut], self.max_ops(t-1) if t else [], start=2, per=1)
            held = mm[cut:]
        s.wait(lg='k3')
        self.qk_last(s, self.exp_setup(L_PA))
        self.stamp(s, 'qk:3')
        self.max_publish(s, M_MAXA)
        self.stamp(s, 'qk:pub')
        s.i('s_waitcnt lgkmcnt(0)\ns_barrier')
        self.stamp(s, 'bmaxA')
        self.exp_phase(s, M_MAXA, M_LA, [], {12: ['v_mov_b32 v252, 0', (f'ds_write_b32 v250, v252 offset:{M_FLG}', 'fz')]}, o['wdA'])
        self.stamp(s, 'x:' + 'expA')
        s.i(f'v_add_u32 v15, {L_PA}, v1')
        s.i('s_waitcnt lgkmcnt(0)\ns_barrier')
        self.stamp(s, 'bPA')
        PF = [40, 192]
        def p_reads(n, buf, tag): return [(f'ds_read_b128 {vr(PF[buf]+4*m,4)}, v15 offset:{n*6144 + m*1024}', tag) for m in range(6)]
        def vrd(k):
            return [(f'ds_read_b64_tr_b16 {vr(Vreg(k)+4*tt+2*h,2)}, v{7 + tt + 2*(VA[k][h] >> 16)} offset:{VA[k][h] & 0xffff}', f'vr{k}') for tt in range(2) for h in range(2)]
        def pv(n, buf, first, chain=True):
            if chain and o['chain']:
                idx = [(ks if (tt*3 + rt) % 2 == 0 else 1 - ks, tt, rt) for tt in range(2) for rt in range(3) for ks in range(2)]
                return [mfma(acc(tt, rt), Vreg(2*n+ks)+4*tt, PF[buf]+12*ks+4*rt, None if (first and m % 2 == 0) else acc(tt, rt)) for m, (ks, tt, rt) in enumerate(idx)]
            return [mfma(acc(tt, rt), Vreg(2*n+ks)+4*tt, PF[buf]+12*ks+4*rt, None if (first and ks == 0) else acc(tt, rt)) for ks in range(2) for tt in range(2) for rt in range(3)]
        def capped(items):
            out = []
            for x in items:
                out.append(lambda x=x: (s.i('s_waitcnt lgkmcnt(10)') if len(s.lg) - s.lg_done >= 14 else None, s.emit(x)))
            return out
        T = self.TMP
        for it in p_reads(0, 0, 'a0')[:3] + vrd(0) + p_reads(0, 0, 'a0')[3:] + vrd(1): s.emit(it)
        def stats(dst_lse):
            st = []
            for rt in range(3):
                r = T + 4*rt
                st += [f'v_add_f32 v{r}, v{r}, v{r+1}', f'v_add_f32 v{r+2}, v{r+2}, v{r+3}', f'v_add_f32 v{r}, v{r}, v{r+2}',
                       f'v_rcp_f32 v{232+rt}, v{r}', f'v_log_f32 v{r}, v{r}']
            return st + [f'v_add_f32 v{dst_lse+rt}, v{T+4*rt}, v{self.MC+rt}' for rt in range(3)]
        vsched = {0: [2, 3, 6, 7], 1: [4, 5, 8], 2: [9], 4: [10, 11]}
        for n in range(8):
            mm = pv(n, n & 1, n == 0, n > 0)
            if n == 0:
                s.wait(lg='vr0'); mm = mm[:6] + [{'lg': 'vr1'}] + mm[6:]
            else:
                s.wait(lg=f'a{n}'); s.wait(lg=f'vr{2*n}'); s.wait(lg=f'vr{2*n+1}')
            self.stamp(s, f'pva:{n}')
            fill = []
            if n == 2: fill += [{'lg': 'vr8'}, 's_barrier'] + self.v_dma(12, VT, 'v3', 'v') + self.v_dma(13, VT, 'v3', 'v')
            if n == 3: fill += self.v_dma(14, VT, 'v3', 'v') + self.v_dma(15, VT, 'v3', 'v')
            if n + 1 < 8: fill = capped(p_reads(n+1, (n+1) & 1, f'a{n+1}')) + fill
            fill += capped(sum([vrd(k) for k in vsched.get(n, [])], []))
            if n == 3: fill += [(f'ds_read_b128 {vr(T+4*rt,4)}, v251 offset:{M_LA + rt*256}', 'la') for rt in range(3)]
            if n == 5:
                s.weave(mm[:o['v2m']], fill, per=2); mm = mm[o['v2m']:]
                s.wait(vm='v'); s.i('s_barrier')
                fill = capped(vrd(12) + vrd(13))
            if n == 6: fill += capped(vrd(14) + vrd(15))
            if n == 7: fill += ['s_barrier'] + stats(228) + [f'v_min_u32 v{228+rt}, -2, v{228+rt}' for rt in range(3)]
            s.weave(mm, fill, per=2)
        self.stamp(s, 'PVA')
        if o['prioB']: s.i(f's_setprio {o["prioB"]+1}')
        s.i(f'v_add_u32 v15, {L_PB}, v1')
        for rt in range(3):
            for tt in range(2):
                a = acc(tt, rt); d = 216 + 4*rt + 2*tt
                for e in range(4): s.i(f'v_mul_f32 v{a+e}, v{a+e}, v{232+rt}')
                s.i(f'v_cvt_pk_bf16_f32 v{d}, v{a}, v{a+1}\nv_cvt_pk_bf16_f32 v{d+1}, v{a+2}, v{a+3}')
                s.i(f'v_min_u32 v{d}, -2, v{d}\nv_min_u32 v{d+1}, -2, v{d+1}')
        def posend():
            self.xstores(s, [f'buffer_store_dwordx4 {vr(216+4*n,4)}, v1, {WS}, {sXO} offen offset:{n*1024}' for n in range(3)] +
                         ['s_mov_b64 exec, 0xffff', f'buffer_store_dwordx4 v[228:231], v1, {WS}, {sXO} offen offset:3072', 's_mov_b64 exec, -1'], 'pos')
        if o['poearly']: posend()
        if o['prioB']: s.i('s_setprio 0')
        s.i('s_barrier')
        self.stamp(s, 'bPB')
        UL = [u for t in TORD for u in (2*t, 2*t+1)]
        for it in p_reads(UL[0], 0, 'c0'): s.emit(it)
        if not o['poearly']: posend()
        st = [(f'ds_read_b128 {vr(T+4*rt,4)}, v251 offset:{M_MAXB + rt*256}', 'sb') for rt in range(3)]
        st1 = [{'lg': 'sb'}]
        for rt in range(3):
            r = T + 4*rt
            st1 += [f'v_max3_f32 v{r}, v{r}, v{r+1}, v{r+2}', f'v_max_f32 v{r}, v{r}, v{r+3}', f'v_mul_f32 v{self.MC+rt}, {sC}, v{r}']
        st2 = [(f'ds_read_b128 {vr(T+4*rt,4)}, v251 offset:{M_LB + rt*256}', 'sc') for rt in range(3)]
        st3 = [{'lg': 'sc'}] + stats(self.MC)
        pol = [(f'buffer_load_dwordx4 v[228:231], v4, {WS}, {sXP} offen offset:3072 sc1', 'pol')] + \
              [(f'buffer_load_dwordx4 {vr(216+4*n,4)}, v1, {WS}, {sXP} offen offset:{n*1024} sc1', 'pol') for n in range(3)]
        XR = Vreg(2*UL[0])
        def pocheck():
            chk, rl = self.lab('pochk'), self.lab('poreload')
            s.i(f's_mov_b32 {sCNT}, 0\n{chk}:')
            s.i('s_waitcnt vmcnt(0)')
            s.i('v_max3_u32 v246, v216, v217, v218\nv_max3_u32 v247, v219, v220, v221')
            for n in (222, 226): s.i(f'v_max3_u32 v246, v246, v{n}, v{n+1}\nv_max3_u32 v247, v247, v{n+2}, v{n+3}')
            s.i(f'v_max3_u32 v246, v246, v230, v247\nv_cmp_eq_u32 vcc, -1, v246')
            for rt in range(3): s.i(f'v_sub_f32 v{240+rt}, v{self.MC+rt}, v{228+rt}\nv_sub_f32 v{243+rt}, v{228+rt}, v{self.MC+rt}')
            s.i(f's_cbranch_vccnz {rl}')
            self.cold += [f'{rl}:', f'    s_add_u32 {sCNT}, {sCNT}, 1', f'    s_cmp_gt_u32 {sCNT}, {SPIN_MAX}', '    s_cbranch_scc1 L_end'] + ['    ' + x[0] for x in pol] + [f'    s_branch {chk}']
            self.stamp(s, 'x:' + 'pogot')
        cmb = [f'v_exp_f32 v{240+n}, v{240+n}' for n in range(6)] + [f'v_add_f32 v{240+n}, 1.0, v{240+n}' for n in range(6)] + \
              [f'v_rcp_f32 v{240+n}, v{240+n}' for n in range(6)]
        for n in range(12): cmb += [f'v_lshlrev_b32 v{XR+2*n}, 16, v{216+n}', f'v_and_b32 v{XR+2*n+1}, 0xffff0000, v{216+n}']
        cmb += [f'v_mul_f32 v{232+rt}, v{232+rt}, v{243+rt}' for rt in range(3)]
        cmb += [f'v_mul_f32 v{XR+n}, v{XR+n}, v{240+n//8}' for n in range(24)]
        assert 2 < o['ck'] and o['pk'] < o['ck']
        for n, u in enumerate(UL):
            s.wait(lg=f'c{n}')
            self.stamp(s, f'pvb:{n}')
            mm = pv(u, n & 1, n == 0)
            fill = []
            if n + 1 < 8: fill += p_reads(UL[n+1], (n+1) & 1, f'c{n+1}')
            if n == 0: fill += st
            if n == 1: fill += st1 + st2
            if n == o['pk']: fill += pol
            if n == 2: fill += st3
            if n == o['ck']:
                s.weave(mm[:3], fill, per=2); mm = mm[3:]; fill = []
                pocheck()
            if n >= o['ck']:
                k = len(cmb) if n == 7 else 20
                fill += cmb[:k]; cmb = cmb[k:]
            s.weave(mm, fill, per=2)
        self.stamp(s, 'PVB')
        if o['ck'] == 8:
            pocheck()
            for x in cmb: s.i(x)
        for rt in range(3):
            for tt in range(2):
                a = acc(tt, rt); x = XR + 8*rt + 4*tt; d = 216 + 4*rt + 2*tt
                for e in range(4): s.i(f'v_fmac_f32 v{x+e}, v{a+e}, v{232+rt}')
                s.i(f'v_cvt_pk_bf16_f32 v{d}, v{x}, v{x+1}\nv_cvt_pk_bf16_f32 v{d+1}, v{x+2}, v{x+3}')
            self.xstores(s, [f'buffer_store_dwordx4 {vr(216+4*rt,4)}, v1, {WS}, {sXP} offen offset:{rt*1024}'], 'os')
        self.stamp(s, 'T2')
        s.i(f'ds_write_b32 v250, v255 offset:{M_FLG}', 'fw')
        s.i(f's_lshl_b32 {sT2}, {sG}, 5\ns_add_u32 {sT2}, {sT2}, {sW}\ns_lshl_b32 {sT2}, {sT2}, 12\ns_add_u32 {sT2}, {sT2}, {WS_X}\ns_mul_i32 s3, {sW}, 3072')
        for t in range(8):
            self.ord_t(s, f's{TAB+t}', ORDS[o['woord']][t])
            s.i(f's_lshl_b32 s{TAB+t}, s{TAB+t}, 14\ns_add_u32 s{TAB+t}, s{TAB+t}, {sT2}')
        s.i(f's_lshl2_add_u32 {sT2}, {sG}, {sW}\ns_lshl_b32 {sT2}, {sT2}, 7\ns_add_u32 {sT2}, {sT2}, {WS_OFL}')
        s.wait(vm='os')
        self.stamp(s, 'o:ack')
        self.flag(s, 'o', 'of')
        self.lds_wait(s, M_FLG, 0)
        self.stamp(s, 'o:done')
        self.poll(s, o['opoll'], sT2, 0, 8, 1)
        self.stamp(s, 'oflags')
        def o_dma(t):
            s.i(f's_add_u32 m0, s3, {L_O + t*12288}')
            for rt in range(3): s.i(f'buffer_load_dwordx4 v1, {WS}, s{TAB+t} offen offset:{rt*1024} sc1 lds', f'o{t}')
        for t in range(4): o_dma(t)
        s.wait(vm='o0'); s.i('s_barrier')
        o_dma(4); o_dma(5)
        s.wait(vm='o2'); s.i('s_barrier')
        o_dma(6); o_dma(7)
        self.wo_setup(s, {6: f's{TAB}', 7: f's{TAB+1}'})
        s.wait(vm='o5'); s.i('s_barrier')
        for k, off in ((13, (f's{TAB}', 32*2048)), (14, f's{TAB+1}'), (15, (f's{TAB+1}', 32*2048))):
            for it in self.w_dma(WO, k % 3, off, 'wl'): s.emit(it)
        s.wait(vm='wl'); s.i('s_barrier')
        self.stamp(s, 'odone')
        s.i(f's_lshl2_add_u32 {sT0}, {sB}, {sW}\ns_lshl3_add_u32 {sT0}, {sT0}, {sJ}\ns_lshl_b32 {sT2}, {sT0}, 7')
        self.poll(s, 's', sT2, 4, 1, '0x01010101')
        s.i(f's_cmp_eq_u32 {sW}, 3\ns_cbranch_scc1 L_a3')
        s.i(f's_mul_i32 {sT1}, {sL}, 12288\ns_lshl_b32 {sT0}, {sW}, 10\ns_add_u32 {sT1}, {sT1}, {sT0}\ns_add_u32 {sT1}, {sT1}, {WS_S2}')
        for n in range(1, 4):
            s.i(f's_add_u32 {sT2}, {sHKV}, {n}\ns_and_b32 {sT2}, {sT2}, 3\ns_mul_i32 {sT2}, {sT2}, 3072\ns_add_u32 s{TAB+n}, {sT2}, {sT1}')
        s.i(f's_mul_i32 {sT1}, {sHKV}, 12288\ns_add_u32 {sT1}, {sT1}, {sT0}\nv_add_u32 v14, {sT1}, v1')
        s.i(f's_xor_b32 {sT1}, {sHKV}, 1\ns_mul_i32 {sT1}, {sT1}, 12288\ns_add_u32 {sT1}, {sT1}, {sT0}\nv_add_u32 v13, {sT1}, v1')
        s.i('v_and_b32 v2, 15, v0\nv_lshlrev_b32 v2, 11, v2\nv_bfe_u32 v3, v0, 4, 1\nv_lshl_or_b32 v2, v3, 5, v2\nv_lshrrev_b32 v3, 5, v0\nv_lshl_or_b32 v2, v3, 4, v2')
        s.i(f's_mul_i32 s{TAB+4}, {sB}, {48*2048}\ns_lshl_b32 {sT0}, {sJ}, 8\ns_add_u32 s{TAB+4}, s{TAB+4}, {sT0}\ns_lshl_b32 {sT0}, {sHKV}, 6\ns_add_u32 s{TAB+4}, s{TAB+4}, {sT0}')
        s.i(f's_lshl_b32 {sT0}, {sW}, 15\ns_add_u32 s{TAB+4}, s{TAB+4}, {sT0}')
        s.i('s_barrier')
        for tt in range(2): s.i(f'ds_read_b128 {vr(16+4*tt,4)}, v13 offset:{L_V + tt*3072}', 'fa')
        s.i('s_barrier')
        for tt in range(2): s.i(f'ds_read_b128 {vr(24+4*tt,4)}, v14 offset:{L_V + 6144 + tt*3072}', 'fa')
        s.wait(lg='fa')
        for e in range(8): s.i(f'v_add_f32 v{16+e}, v{16+e}, v{24+e}')
        self.stamp(s, 'sent')
        lp = self.spin_head(s, 's2')
        for n in range(3): s.i(f'buffer_load_dwordx4 {vr(32+4*n,4)}, v1, {WS}, s{TAB+1+n} offen sc1', 'in')
        s.i('s_waitcnt vmcnt(0)')
        s.i('v_max3_u32 v4, v32, v33, v34\nv_max3_u32 v5, v35, v36, v37\nv_max3_u32 v4, v4, v38, v39\nv_max3_u32 v5, v5, v40, v41\nv_max3_u32 v4, v4, v42, v43')
        s.i(f'v_max_u32 v4, v4, v5\nv_cmp_eq_u32 vcc, -1, v4')
        for n in range(5): s.i(f'v_lshlrev_b32 v{48+n}, 16, v{32+n}')
        s.i(f's_cbranch_vccnz {lp}')
        self.stamp(s, 'got')
        for n in range(5, 12): s.i(f'v_lshlrev_b32 v{48+n}, 16, v{32+n}')
        for n in range(12): s.i(f'v_and_b32 v{32+n}, 0xffff0000, v{32+n}')
        for n in range(12): s.i(f'v_add_f32 v{16+2*(n%4)}, v{16+2*(n%4)}, v{48+n}\nv_add_f32 v{17+2*(n%4)}, v{17+2*(n%4)}, v{32+n}')
        for n in range(4): s.i(f'v_cvt_pk_bf16_f32 v{24+n}, v{16+2*n}, v{17+2*n}')
        s.i(f'v_permlane16_swap_b32 v24, v26\nv_permlane16_swap_b32 v25, v27')
        s.i(f'buffer_store_dwordx4 v[24:27], v2, {OUT}, s{TAB+4} offen {o["outsc"]}', 'out')
        if self.diag: s.i('s_waitcnt vmcnt(0)')
        self.stamp(s, 'end')
        self.dump_stamps(s)
        if self.opt.get('amp'):
            s.i('s_waitcnt vmcnt(0) lgkmcnt(0)\ns_memrealtime s[74:75]\ns_sub_u32 s72, s72, s70\ns_min_u32 s72, s72, 10000\ns_mul_i32 s72, s72, 8\ns_waitcnt lgkmcnt(0)')
            s.i('L_amp:\ns_memrealtime s[76:77]\ns_waitcnt lgkmcnt(0)\ns_sub_u32 s76, s76, s74\ns_cmp_lt_u32 s76, s72\ns_cbranch_scc1 L_amp')
        s.i('s_endpgm')
        s.i('L_a3:')
        if o['wb'] == 1:
            s.i(f's_or_b32 {sT0}, {sJ}, {sBL}\ns_cbranch_scc1 L_end')
            self.raw(s, 'buffer_wbl2 sc1')
            self.raw(s, 's_barrier'); self.raw(s, 's_barrier'); self.xbar = 2
        s.i('s_endpgm')

    xbar = 0
    def wo_setup(self, s, TB):
        sHKV, sJ = (0, 0) if self.opt.get('fake') else (globals()['sHKV'], globals()['sJ'])
        self.stream_setup(s, 11, 15360)
        s.i(f's_lshl_b32 {sT2}, {sHKV}, 21\ns_and_b32 {sT0}, {sW}, 1\ns_lshl_b32 {sT0}, {sT0}, 17\ns_add_u32 {sT2}, {sT2}, {sT0}')
        s.i(f's_lshl_b32 {sT0}, {sJ}, 8\ns_add_u32 {sT2}, {sT2}, {sT0}\ns_lshr_b32 {sT0}, {sW}, 1\ns_lshl_b32 {sT0}, {sT0}, 7\ns_add_u32 {sT2}, {sT2}, {sT0}')
        for tt, d in TB.items():
            self.ord_t(s, d, ORDS[self.opt['woord']][tt])
            s.i(f's_lshl_b32 {d}, {d}, 18\ns_add_u32 {d}, {d}, {sT2}')

    def roleB(self, s):
        o = self.opt
        self.k3alt = False
        sK1, sK2, sXS, sWS = 's52', 's53', 's54', 's55'
        self.srds(s, [(4, 384*2048), (16, 8<<20)])
        s.i(f'v_lshrrev_b32 v4, 4, v0\ns_lshl_b32 {sT0}, {sW}, 2\nv_add_u32 v5, {sT0}, v4')
        s.i(f'v_xor_b32 v6, v5, v0\nv_and_b32 v6, 15, v6\nv_lshlrev_b32 v6, 4, v6\nv_lshl_or_b32 v2, v5, 11, v6')
        s.i(f'v_lshlrev_b32 v7, 1, v5\nv_xor_b32 v7, v7, v0\nv_and_b32 v7, 15, v7\nv_lshlrev_b32 v7, 4, v7\nv_add_u32 v8, {sT0}, v5\nv_lshl_or_b32 v3, v8, 13, v7')
        s.i(f's_lshl_b32 s3, {sW}, 10\ns_mul_i32 {sXS}, {sB}, {48*2048}\ns_lshl3_add_u32 {sWS}, {sHKV}, {sJ}\ns_lshl_b32 {sWS}, {sWS}, 8')
        if o.get('fake'): s.i(f's_mov_b32 {sWS}, 0\ns_mov_b32 {sXS}, 0')
        s.i(f's_mov_b32 {sK1}, 0x8000\ns_mov_b32 {sK2}, {0x40000 - 0x8000}')
        VT = {0: 's4', 1: 's5', 2: 's6', 3: 's16'}
        def issue(si, first=False):
            kind, t = self.steps[si]; base = SL[slot(si)]; tag = f's{si}'
            if kind == 'w':
                self.ord_t(s, sT0, ORDS[o['wqord']][t])
                if o.get('jrot', 1): s.i(f's_add_u32 {sT0}, {sT0}, {sJ}\ns_and_b32 {sT0}, {sT0}, 7')
                s.i(f's_lshl_b32 {sT2}, {sT0}, 8\ns_add_u32 {sT2}, {sT2}, {sXS}\ns_lshl_b32 {sT3}, {sT0}, 20\ns_add_u32 {sT3}, {sT3}, {sWS}')
                s.i(f's_add_u32 m0, s3, {base}' if base else f's_mov_b32 m0, s3')
                if first: s.i('s_waitcnt lgkmcnt(0)')
                for rt in range(3):
                    s.i(f'buffer_load_dwordx4 v2, {X}, {sT2} offen lds', tag)
                    s.i(f's_addk_i32 m0, 4096')
                    if rt < 2: s.i(f's_add_u32 {sT2}, {sT2}, {sK1}')
                for n in range(8):
                    s.i(f'buffer_load_dwordx4 v3, {WQ}, {sT3} offen lds', tag)
                    if n < 7: s.i(f's_addk_i32 m0, 4096\ns_add_u32 {sT3}, {sT3}, {sK2 if n & 1 else sK1}')
            else:
                s.i(f's_add_u32 m0, s3, {base + SLW}\ns_mov_b32 {sT3}, {VT[t]}')
                for n in range(8):
                    s.i(f'buffer_load_dwordx4 v247, {K}, {sT3} offen lds', tag)
                    if n < 7: s.i(f's_addk_i32 m0, 4096\ns_addk_i32 {sT3}, 4096')
        issue(0, True); issue(1)
        s.i('L_first_end:')
        self.srds(s, [(8, 8<<20), (12, 8<<20), (20, 8<<20), (24, 384*2048), (28, 256<<20)])
        s.i('v_lshl_or_b32 v247, v5, 8, v6\nv_lshl_or_b32 v248, v5, 8, v7')
        self.kv_table(s, {t: f's{TAB+t}' for t in range(4)})
        s.i(f's_mov_b32 {sC}, {CEXP:#x}')
        s.i('v_mov_b32 v10, v2')
        self.k_addr(s)
        s.i('v_mov_b32 v249, v2\nv_mov_b32 v2, v10')
        self.misc_addr(s)
        self.flag_setup(s)
        sGOT, sQM, sQX = 's19', 's33', 's32'
        qld = [f's_mul_i32 {sT0}, {sW}, 3072', f's_add_u32 m0, {sT0}, {L_Q2}', f's_mov_b32 {sGOT}, 1'] + \
              [f'buffer_load_dwordx4 v1, {WS}, {sQX} offen offset:{rt*1024} sc1 lds' for rt in range(3)]
        nv = 0
        def vgo(n, emit=None):
            nonlocal nv
            for k in range(nv, nv + n):
                for it in self.v_dma(k, VT, 'v2', 'v'): (emit or s.emit)(it)
            nv += n
        for si, (kind, t) in enumerate(self.steps):
            if si == NS:
                s.i('s_barrier')
                self.stamp(s, 'bq')
                if not o['k1early']: issue(NS + 1)
            if si >= NS + 2:
                tag = 'qp2' if si == NS + 2 else f's{si}'
                n = s._cnt(s.vm, s.vm_done, tag); a = self.lab('wq')
                s.i(f's_cmp_lg_u32 {sGOT}, 0\ns_cbranch_scc1 {a}')
                s.wait(vm=tag)
                s.i(f'{a}:')
                self.raw(s, f's_waitcnt vmcnt({n + 3 + (2*o["v0n"] if si == NS + 3 else 0)})')
            else:
                s.wait(vm='qp1' if si == NS + 1 and o['two'] else f's{si}')
            s.i('s_waitcnt lgkmcnt(0)') if si and self.steps[si-1][0] == 'k' else None
            s.i('s_barrier')
            if si == 0: self.stamp(s, 'b0')
            if si == NS and o['two']: s.i(f'buffer_load_dword v245, v254, {WS}, s17 offen sc1', 'qp1')
            if si + 2 < NS + 4 and (si + 2 != NS + 1 or o['k1early']): issue(si + 2)
            if si == NS: s.i(f'buffer_load_dword v244, v254, {WS}, s17 offen sc1', 'qp2')
            if si == NS + 1 and o['two']:
                skip = self.lab('noq')
                s.i(f'v_readfirstlane_b32 {sT0}, v245\ns_cmp_eq_u32 {sT0}, 0x01010101\ns_cbranch_scc0 {skip}')
                for x in qld: self.raw(s, x)
                s.i(f'{skip}:')
            if si == NS + 2:
                skip, gv = self.lab('noq'), self.lab('gov')
                s.i(f's_cmp_lg_u32 {sGOT}, 0\ns_cbranch_scc1 {gv}')
                s.i(f'v_readfirstlane_b32 {sT0}, v244\ns_cmp_eq_u32 {sT0}, 0x01010101\ns_cbranch_scc0 {skip}')
                for x in qld: self.raw(s, x)
                s.i(f'{gv}:')
                vgo(o['v0n'], lambda it: self.raw(s, it if isinstance(it, str) else it[0])); nv = 0
                s.i(f'{skip}:')
            if si == NS-3:
                for tt in range(4): s.i(f's_mov_b32 {VT[tt]}, s{TAB+tt}')
                s.i('v_mov_b32 v2, v248')
            if si == NS-4: self.fast_test(s, 0)
            if si == NS-3: self.fast_test(s, 1)
            if kind == 'k':
                for it in self.k_reads(t, 'v249'): s.emit(it)
            if si == NS-2 and not o.get('nodbg'):
                s.i(f's_lshl_b32 {sT0}, {sB}, 5\ns_add_u32 s34, s32, {sT0}\ns_addc_u32 s35, s33, 0\ns_load_dwordx8 s[{POLL}:{POLL+7}], s[34:35], 0')
            if si == NS-1 and not o.get('nodbg'):
                ok = self.lab('dbgok')
                s.i('s_waitcnt lgkmcnt(0)')
                self.and8(s)
                s.i(f's_and_b32 s{POLL}, s{POLL}, 0x80808080\ns_cmp_eq_u32 s{POLL}, 0x80808080\ns_cbranch_scc1 {ok}')
                s.i(f's_mov_b32 s60, s32\ns_mov_b32 s61, s33\ns_mov_b32 s62, 256\ns_mov_b32 s63, 0x20000\ns_lshl_b32 {sT1}, {sB}, 5\nv_and_b32 v253, 31, v0')
                lp = self.spin_head(s, 'dbg')
                self.raw(s, f'buffer_load_ubyte v252, v253, s[60:63], {sT1} offen sc1')
                self.raw(s, 's_waitcnt vmcnt(0)')
                s.i(f'v_cmp_eq_u32 vcc, 0, v252\ns_nop 4\ns_cbranch_vccnz {lp}')
                s.i(f'{ok}:')
            if si == NS-2 and o['touch']:
                s.i(f's_xor_b32 {sT0}, {sL}, 1\ns_lshl_b32 {sT0}, {sT0}, 7\ns_add_u32 s34, s28, {sT0}\ns_addc_u32 s35, s29, 0\ns_load_dwordx2 s[0:1], s[34:35], 60')
                s.i(f's_andn2_b32 {sT0}, s69, 127\ns_add_u32 s34, s28, {sT0}\ns_addc_u32 s35, s29, 0\ns_load_dwordx2 s[18:19], s[34:35], 60')
                if o.get('nodbg'): s.i('s_waitcnt lgkmcnt(0)')
            if si == NS-1:
                s.i(f's_xor_b32 s17, {sL}, 1\ns_lshl_b32 s17, s17, 7\ns_add_u32 s34, s28, s17\ns_addc_u32 s35, s29, 0')
                s.i(f's_lshl_b32 {sQM}, {sW}, 3\ns_lshl_b32 {sQM}, 1, {sQM}\ns_mov_b32 {sGOT}, 0')
                self.xb_off(s, sQX, False)
                for r in range(4): s.i(f'v_mov_b32 v{240+r}, -1')
                if o['pfbal']:
                    s.i(f'v_lshlrev_b32 v246, 7, v0')
                    s.i(f's_lshl_b32 {sT2}, {sHKV}, 21\ns_lshl2_add_u32 {sT0}, {sJ}, {sW}\ns_lshl_b32 {sT0}, {sT0}, 13\ns_add_u32 {sT2}, {sT2}, {sT0}')
                else:
                    s.i(f'v_lshrrev_b32 v246, 1, v0\nv_lshlrev_b32 v246, 11, v246\nv_and_b32 v245, 1, v0\nv_lshl_or_b32 v246, v245, 7, v246')
                    s.i(f's_lshl_b32 {sT2}, {sHKV}, 21\ns_lshl_b32 {sT0}, {sW}, 16\ns_add_u32 {sT2}, {sT2}, {sT0}\ns_lshl_b32 {sT0}, {sJ}, 8\ns_add_u32 {sT2}, {sT2}, {sT0}')
                for n in range(2):
                    self.ord_t(s, f's{n}', (n, 0))
                    s.i(f's_lshl_b32 s{n}, s{n}, 18\ns_add_u32 s{n}, s{n}, {sT2}')
                self.wo_setup(s, {tt: f's{TAB+tt}' for tt in range(7)})
        wo_off = lambda k: f's{TAB+(k>>1)}' if k % 2 == 0 else (f's{TAB+(k>>1)}', 32*2048)
        self.stamp(s, 'b11')
        def clr():
            for r in range(4): s.i(f'v_mov_b32 v{240+r}, -1')
            s.i(f's_mul_i32 {sT1}, {sL}, 12288\ns_mul_i32 {sT0}, {sW}, 3072\ns_add_u32 {sT1}, {sT1}, {sT0}\ns_add_u32 {sT1}, {sT1}, {WS_S2}')
            s.i(f's_cmp_eq_u32 {sW}, {sHKV}\ns_cselect_b32 {sT1}, 0x10000000, {sT1}')
            for rt in range(3): s.i(f'buffer_store_dwordx4 v[240:243], v1, {WS}, {sT1} offen offset:{rt*1024} sc1', 'clr2')
        got = self.lab('qgot')
        s.i(f's_cmp_lg_u32 {sGOT}, 0\ns_cbranch_scc1 {got}')
        self.poll(s, 'v', 's17', 0, 1, '0x01010101')
        for x in qld: s.i(x, 'q2')
        vgo(o['v0n'])
        s.i(f'{got}:')
        self.stamp(s, 'qseen')
        def poison():
            self.xstores(s, [f'buffer_store_dwordx4 v[240:243], v1, {WS}, {sQX} offen offset:{n*1024}' for n in range(3)] +
                         ['s_mov_b64 exec, 0xffff', f'buffer_store_dwordx4 v[240:243], v1, {WS}, {sQX} offen offset:3072', 's_mov_b64 exec, -1'], 'clr')
        s.i(f'v_add_u32 v249, {L_Q2}, v1')
        s.wait(vm='q2')
        self.stamp(s, 'tq')
        if o['poisonm'] == -1: poison()
        if o['clrB'] == -1: clr()
        vgo(o['vmid'])
        assert nv <= 10
        s.i('s_waitcnt lgkmcnt(0)\ns_barrier')
        self.stamp(s, 'bmaxA')
        for u in range(4):
            for rt in range(3): s.i(f'ds_read_b128 {vr(self.Qreg(u,rt),4)}, v249 offset:{(u*3+rt)*1024}', f'q{u}')
        s.i('v_mov_b32 v11, v246')
        rest = [self.v_dma(k, VT, 'v2', 'v' if k < 12 - o['vstage'] else 'vs')[3*h:3*h+3] for k in range(nv, 12) for h in range(2)]
        assert o['vstage'] <= 3 and nv < 12 - o['vstage']
        vb = {o['vb0'] + n*o['vbs']: x for n, x in enumerate(rest)}
        assert max(vb) < 96
        cnt = [0]
        def M(x):
            def f():
                s.i(x);
                if cnt[0] == o['poisonm']: poison()
                if cnt[0] == o['cfm']:
                    s.wait(vm='clr'); self.flag(s, 2, 'cf', always_slow=True)
                    if o['clrB'] == -1:
                        s.wait(vm='clr2'); self.flag(s, 1, 'cf', always_slow=True)
                for it in vb.get(cnt[0], []): s.emit(it)
                if cnt[0] == o['pfq']: s.i(f'buffer_load_dword v252, v11, {WO}, s0 offen', 'pf')
                cnt[0] += 1
            return f
        mm = [M(x) for x in self.qk_mfmas(0, chain=False)]
        for u in range(4):
            s.wait(lg=f'q{u}')
            for x in mm[6*u:6*u+6]: s.emit(x)
        for t in (1, 2): s.weave([M(x) for x in self.qk_mfmas(t)], self.max_ops(t-1), start=3)
        self.qk_last(s, self.exp_setup(L_PB), M)
        self.max_publish(s, M_MAXB)
        self.stamp(s, 'QKB')
        s.wait(vm='v')
        s.i('s_waitcnt lgkmcnt(0)\ns_barrier')
        if o['prioB']: s.i(f's_setprio {o["prioB"]}')
        RW, NP = 3, 10
        v3g = o['v3g']
        assert o['v1g'] < o['v2g'] <= max(5, o['wdB'] + 1) and o['v2g'] < v3g <= 11
        hooks = {('pre', o['v1g']): ([{'vm': 'vs'}] if o['vstage'] else []) + ['s_barrier'], ('pre', o['v2g']): ['s_barrier'], ('pre', v3g): ['s_barrier']}
        for n, g in enumerate(self.ints('pf'), 1 if o['pfq'] >= 0 else 0):
            hooks.setdefault(g, []).append((f'buffer_load_dword v{252+n}, v11, {WO}, s{n} offen', 'pf'))
        wog = self.ints('wog')
        for k in range(2 if o['d2'] else 3):
            assert wog[k] >= o['v2g']
            hooks.setdefault(wog[k], []).extend(self.w_dma(WO, k, wo_off(k), f'w{k}'))
        wp = []
        hooks.setdefault(7, []).insert(0, f's_load_dword s{POLL}, s[34:35], 8 glc')
        def chk():
            lp, ok = self.lab('cfpoll'), self.lab('cfok')
            s.i(f's_waitcnt lgkmcnt(0)\ns_mov_b32 {sCNT}, 0\ns_cmp_eq_u32 s{POLL}, 0x01010101\ns_cbranch_scc0 {lp}\n{ok}:')
            self.cold += [f'{lp}:', f'    s_add_u32 {sCNT}, {sCNT}, 1', f'    s_cmp_gt_u32 {sCNT}, {SPIN_MAX}', '    s_cbranch_scc1 L_end',
                          f'    s_load_dword s{POLL}, s[34:35], 8 glc', '    s_waitcnt lgkmcnt(0)', f'    s_cmp_eq_u32 s{POLL}, 0x01010101', f'    s_cbranch_scc0 {lp}', f'    s_branch {ok}']
            self.stamp(s, 'exp:b1')
        self.exp_phase(s, M_MAXB, M_LB, [], hooks, o['wdB'])
        if o['prioB']: s.i('s_setprio 0')
        self.stamp(s, 'expB')
        chk()
        for it in hooks.get(13, []): s.emit(it)
        s.i('s_barrier')
        if o['clrB'] == 1: clr()
        for it in hooks.get(14, []): s.emit(it)
        PK = lambda k: PARK[k % NP]
        s.i(f's_and_b32 {sT0}, {sW}, 1\ns_mul_i32 {sT0}, {sT0}, 6144\ns_add_u32 {sT0}, {sT0}, {L_O}\nv_add_u32 v11, {sT0}, v1\nv_add_u32 v12, 49152, v11')
        s.i(f'v_add_u32 v14, {sRING}, v1\ns_xor_b32 {sT0}, {sW}, 1\ns_mul_i32 {sT0}, {sT0}, 12288')
        if L_V: s.i(f's_add_u32 {sT0}, {sT0}, {L_V}')
        s.i(f'v_add_u32 v13, {sT0}, v1')
        NP0 = 10
        for k in range(len(wp), NP0):
            s.wait(vm=f'w{k}')
            self.stamp(s, f'pvb:w{k}')
            if o['d2']:
                if k: s.wait(lg=f'wr{k-1}')
                for it in self.w_dma(WO, (k+2) % RW, wo_off(k+2), f'w{k+2}'): s.emit(it)
            for it in self.w_reads(PK(k), k % RW, f'wr{k}'): s.emit(it)
            if not o['d2'] or k == NP0 - 1:
                if o['d2']: s.wait(vm=f'w{k+1}')
                s.wait(lg=f'wr{k}')
                for it in self.w_dma(WO, k % RW, wo_off(k+RW), f'w{k+RW}'): s.emit(it)
            if o['clrB'] >= 2 and k == o['clrB'] - 2: clr()
            if o['clrB'] > 0 and k == min(NP0 - 1, o['clrB'] + 2):
                s.wait(vm='clr2'); self.flag(s, 1, 'cf', always_slow=True)
        self.stamp(s, 'parked')
        TL = o['tl']
        OFX = lambda k: [224, 236][k & 1] if k <= 16 - TL + 1 else PARK[6 + (k & 1)]
        def o_reads(k): return [(f'ds_read_b128 {vr(OFX(k)+4*rt,4)}, v{11+(k>>3)} offset:{((k>>1)&3)*12288 + (k&1)*3072 + rt*1024}', f'o{k}') for rt in range(3)]
        s.i(f's_lshl2_add_u32 {sT1}, {sB}, {sW}\ns_lshl3_add_u32 {sT1}, {sT1}, {sJ}\ns_mul_i32 {sT1}, {sT1}, 12288\ns_mul_i32 {sT2}, {sHKV}, 3072\ns_add_u32 {sT1}, {sT1}, {sT2}\ns_add_u32 {sT1}, {sT1}, {WS_S2}')
        s.i('s_barrier')
        self.stamp(s, 'bO0')
        for it in o_reads(0): s.emit(it)
        wrd = lambda kk: self.w_reads(PK(kk), kk % RW, f'wr{kk}')
        K3 = o.get('k3bar', 10); K2 = o.get('k2bar', 5)
        for k in range(16 - TL):
            s.wait(lg=f'o{k}')
            if k % 2 == 0: self.stamp(s, f'p3:{k}')
            mm = self.g_mfmas(PK(k), OFX(k), k == 0)
            fill = o_reads(k+1)
            if k in (1, 2, 3): fill += [{'vm': f'w{k+9}'}] + wrd(k+9)
            if o['wb'] >= 4 and k == o['wb']:
                def wbk():
                    skip = self.lab('nowb')
                    s.i(f's_or_b32 {sT0}, {sJ}, {sBL}\ns_or_b32 {sT0}, {sT0}, {sW}\ns_cbranch_scc1 {skip}')
                    self.raw(s, 'buffer_wbl2 sc1')
                    s.i(f'{skip}:')
                fill += [wbk]
            if k == K3: fill += wrd(13)
            if k == K3 + 1: fill += wrd(14) + (['s_waitcnt lgkmcnt(6)'] + wrd(15) if K3 + 2 >= 16 - TL else [])
            if k == K3 + 2: fill += wrd(15)
            if k in (1, K2, K3):
                for x in mm[:5]: s.i(x)
                if k == K2: s.wait(lg='wr12')
                s.i('s_barrier')
                s.weave(mm[5:], fill, per=2)
            else:
                s.weave(mm, fill, per=2)
        assert K3 + 1 < 16 - TL and K3 <= 11 and 2 <= TL <= 4
        for k in range(16 - TL, 16):
            s.wait(lg=f'o{k}')
            if k >= 13: s.wait(lg=f'wr{k}')
            s.weave(self.g_mfmas(PK(k), OFX(k), False, (2, 3)), o_reads(k+1) if k < 15 else [], per=1)
        self.stamp(s, 'p3:t')
        mm = sum([self.g_mfmas(PK(k), OFX(k), False, (0, 1)) for k in range(16 - TL, 16)], [])
        nb = len(mm) - 4
        s.weave(mm[:nb], [(f'ds_write_b128 v14, {vr(40+4*n,4)} offset:{n*1024}', 'pw') for n in range(6)], start=2)
        s.i('s_waitcnt lgkmcnt(0)\ns_barrier')
        s.weave(mm[nb:], [(f'ds_read_b128 {vr(40+4*n,4)}, v13 offset:{n*1024}', f'pr{n}') for n in (0, 3, 1, 4, 2, 5)], per=2)
        self.stamp(s, 'P3')
        s.i(f's_cmp_eq_u32 {sW}, {sHKV}\ns_cbranch_scc1 L_own')
        r = s.fork('B')
        for rt in range(3):
            for tt in range(2):
                n = 3*tt + rt; a = 16 + 4*n; d = 64 + 4*rt + 2*tt
                s.wait(lg=f'pr{n}')
                for e in range(4): s.i(f'v_add_f32 v{a+e}, v{a+e}, v{40+4*n+e}')
                s.i(f'v_cvt_pk_bf16_f32 v{d}, v{a}, v{a+1}\nv_cvt_pk_bf16_f32 v{d+1}, v{a+2}, v{a+3}')
                s.i(f'v_min_u32 v{d}, -2, v{d}\nv_min_u32 v{d+1}, -2, v{d+1}')
            s.i(f'buffer_store_dwordx4 {vr(64+4*rt,4)}, v1, {WS}, {sT1} offen offset:{rt*1024} sc1', 's2')
        saved = list(self.stamps['B'])
        self.stamp(s, 'sent')
        s.i('s_barrier')
        self.dump_stamps(s)
        s.i('s_endpgm')
        self.stamps['B'] = saved
        r.i('L_own:')
        for n in range(6): r.i(f'ds_write_b128 v14, {vr(16+4*n,4)} offset:{6144 + n*1024}', 'pw')
        self.stamp(r, 'sent')
        r.i('s_waitcnt lgkmcnt(0)\ns_barrier')
        self.dump_stamps(r)
        r.i('L_end:\ns_endpgm')
        return r

    def build(self):
        p = self.prologue()
        a = p.fork('A'); b = p.fork('B')
        r = self.roleB(b)
        self.roleA(a)
        nb = lambda *ss: sum(1 for s in ss for x in s.out if x.op == 's_barrier')
        assert nb(a) - self.xbar == nb(b), (nb(a), nb(b))
        o = [HDR, '; @launch grid=(256,1,1) block=(512,1,1) lds=163840',
             '.amdgcn_target "amdgcn-amd-amdhsa--gfx950"', '.text', f'.globl {NAME}', '.p2align 8', f'.type {NAME},@function', f'{NAME}:',
             p.text(), b.text(), r.text(), a.text(), '\n'.join(self.cold), 'L_codeend:', '    s_endpgm',
             f'''.section .rodata,"a"
.p2align 6
.amdhsa_kernel {NAME}
  .amdhsa_next_free_vgpr 256
  .amdhsa_next_free_sgpr 102
  .amdhsa_accum_offset 256
  .amdhsa_group_segment_fixed_size 0
  .amdhsa_kernarg_size 64
  .amdhsa_user_sgpr_count 2
  .amdhsa_user_sgpr_kernarg_segment_ptr 1
  .amdhsa_system_sgpr_workgroup_id_x 1
.end_amdhsa_kernel''']
        self.nops = (a.nops, b.nops, r.nops)
        return '\n'.join(o) + '\n'

if __name__ == '__main__':
    opts = dict(kv.split('=') for kv in sys.argv[1:] if '=' in kv)
    opts = {k: (int(v) if v.lstrip('-').isdigit() else v) for k, v in opts.items()}
    g = Gen(diag='diag' in sys.argv, fast='slow' not in sys.argv, **opts)
    t = g.build()
    out = [a for a in sys.argv[1:] if a.endswith('.s')]
    open(out[0] if out else 'k.s', 'w').write(t)
    print('nops', g.nops, 'lines', t.count('\n'), g.stamps)
```
